```python
import torch

def _softmax(x, axis=-1):
    return torch.softmax(x, dim=axis)
def _gelu(x):
    return torch.nn.functional.gelu(x, approximate="tanh")
def _silu(x):
    return torch.nn.functional.silu(x)
def _sigmoid(x):
    return torch.sigmoid(x)
def _layernorm(x, axis=-1, eps=1e-5):
    m = x.mean(dim=axis, keepdim=True)
    v = x.var(dim=axis, keepdim=True, unbiased=False)
    return (x - m) / torch.sqrt(v + eps)
def _scatter_add(tgt, idx, src, axis=0):
    return tgt.clone().index_add_(axis, idx, src)
def _segment_sum(src, seg, n):
    out = torch.zeros((n,) + src.shape[1:], dtype=src.dtype)
    return out.index_add_(0, seg, src)
def _pad(x, pw):
    flat = tuple(v for pair in reversed(pw) for v in pair)
    return torch.nn.functional.pad(x, flat)

kernel_name = 'concat_heads__grouped_kv_mqa__spectral_fnet__prompt'

def setup_inputs():

    _w = (lambda a: (lambda t: t.to(torch.bfloat16) if t.is_floating_point() else t)(torch.as_tensor(a)))
    def _A_setup():
        B, S, D, H = 1, 2048, 576, 32
        Dh = D // H
        return {
            "x": _w((lambda *s: torch.randn(*s, dtype=torch.bfloat16) * 0.05)(B, S, D)),
            "wq": _w((lambda *s: torch.randn(*s, dtype=torch.bfloat16) * 3.2)(D, H * Dh)),
            "wk": _w((lambda *s: torch.randn(*s, dtype=torch.bfloat16) * 3.2)(D, Dh)),
            "wv": _w((lambda *s: torch.randn(*s, dtype=torch.bfloat16) * 0.4)(D, Dh)),
            "wo": _w((lambda *s: torch.randn(*s, dtype=torch.bfloat16) * 0.4)(H * Dh, D)),
        }
    _A_in = _A_setup()

    def _B_setup():
        B, S, D = 1, 2048, 576
        ns = torch.arange(S)[:, None] * torch.arange(S)[None, :]
        nd = torch.arange(D)[:, None] * torch.arange(D)[None, :]
        Ws_re = torch.cos(-2.0 * torch.pi * ns / S).to(float)
        Ws_im = torch.sin(-2.0 * torch.pi * ns / S).to(float)
        Wd_re = torch.cos(-2.0 * torch.pi * nd / D).to(float)
        Wd_im = torch.sin(-2.0 * torch.pi * nd / D).to(float)
        return {
            "x": _w((lambda *s: torch.randn(*s, dtype=torch.bfloat16) * 0.05)(B, S, D)),
            "dft_seq_re": _w(Ws_re),
            "dft_seq_im": _w(Ws_im),
            "dft_hid_re": _w(Wd_re),
            "dft_hid_im": _w(Wd_im),
        }
    _B_in = _B_setup()

    return {
        "A_x": _A_in["x"],
        "A_wq": _A_in["wq"],
        "A_wk": _A_in["wk"],
        "A_wv": _A_in["wv"],
        "A_wo": _A_in["wo"],
        "B_x": _B_in["x"],
        "B_dft_seq_re": _B_in["dft_seq_re"],
        "B_dft_seq_im": _B_in["dft_seq_im"],
        "B_dft_hid_re": _B_in["dft_hid_re"],
        "B_dft_hid_im": _B_in["dft_hid_im"],
    }

def reference(A_x, A_wq, A_wk, A_wv, A_wo, B_x, B_dft_seq_re, B_dft_seq_im, B_dft_hid_re, B_dft_hid_im):
    def _A_ref(x, wq, wk, wv, wo):
        B, S, D = x.shape
        H = 32
        Dh = D // H
        q = (lambda x, *d: x.permute(*d))((x @ wq).reshape(B, S, H, Dh), 0, 2, 1, 3)
        k = x @ wk
        v = x @ wv
        scores = torch.einsum("bhqd,bkd->bhqk", q, k) * (Dh ** -0.5)
        p = _softmax(scores, axis=-1)
        o = torch.einsum("bhqk,bkd->bhqd", p, v)
        return (lambda x, *d: x.permute(*d))(o, 0, 2, 1, 3).reshape(B, S, H * Dh) @ wo

    def _B_ref(x, dft_seq_re, dft_seq_im, dft_hid_re, dft_hid_im):
        a = torch.einsum("bsd,ed->bse", x, dft_hid_re)
        b = torch.einsum("bsd,ed->bse", x, dft_hid_im)
        y = torch.einsum("ts,bse->bte", dft_seq_re, a) - torch.einsum("ts,bse->bte", dft_seq_im, b)
        return y

    a = _A_ref(A_x, A_wq, A_wk, A_wv, A_wo)
    b = _B_ref(B_x, B_dft_seq_re, B_dft_seq_im, B_dft_hid_re, B_dft_hid_im)
    return torch.concatenate([a, b], axis=-1)
```

```python
def v(n): return f"v{n}"
def vr(n,c): return f"v[{n}:{n+c-1}]"
def s(n): return f"s{n}"
def sr(n,c): return f"s[{n}:{n+c-1}]"

class Asm:
    def __init__(self):
        self.lines=[]
    def __call__(self, txt):
        for l in txt.strip("\n").split("\n"):
            self.lines.append("    "+l.strip())
    def label(self, l): self.lines.append(f"{l}:")
    def comment(self, c): self.lines.append(f"    ; {c}")
    def raw(self, t): self.lines.append(t)
    def text(self): return "\n".join(self.lines)+"\n"

def kernel_header(name):
    return f""".globl {name}
.p2align 8
.type {name},@function
{name}:
"""
def kernel_desc(name, vgpr, sgpr=96):
    acc=(vgpr+3)//4*4
    return f""".p2align 6
.amdhsa_kernel {name}
  .amdhsa_next_free_vgpr {vgpr}
  .amdhsa_next_free_sgpr {sgpr}
  .amdhsa_accum_offset {acc}
  .amdhsa_group_segment_fixed_size 0
  .amdhsa_kernarg_size 104
  .amdhsa_user_sgpr_count 2
  .amdhsa_user_sgpr_kernarg_segment_ptr 1
  .amdhsa_system_sgpr_workgroup_id_x 1
.end_amdhsa_kernel
"""
def srd(a, d, b, nbytes):
    a(f"s_mov_b32 s{d}, s{b}")
    a(f"s_mov_b32 s{d+1}, s{b+1}")
    a(f"s_mov_b32 s{d+2}, {nbytes}")
    a(f"s_mov_b32 s{d+3}, 0x00020000")

WS_Q   = 0x000000
WS_KF1 = 0x240000
WS_KF2 = 0x250000
WS_VF  = 0x252000
WS_O   = 0x280000
WS_XF  = 0x4C0000
WS_A1T = 0x740000
WS_WOT = 0x8A0000
WS_END = 0x960000
OOB = 0x40000000
```

```python
from asmlib import *

KF1=8; KF2=40; VF=48; S0=112; S1=128; P=144; O=152
QA1=168; QA2=172; QB1=176; QB2=180
OW=184
T=200
VM=216
V7B=217
NV=224
L_QREC=0; L_SLOT=16384; SLOT=2560; L_MAXB=L_SLOT+56*SLOT; L_FLAG=L_MAXB+1024; LDS_BYTES=L_FLAG+16

def gen_attn(name="attn_kernel"):
    a=Asm()
    a.raw(kernel_header(name))
    a("s_cmp_ge_u32 s2, 256")
    a("s_cbranch_scc1 L_at_end")
    a("s_load_dwordx2 s[4:5], s[0:1], 96")
    a("v_and_b32 v1, 63, v0")
    a("v_lshrrev_b32 v2, 6, v0")
    a("v_lshrrev_b32 v3, 5, v1")
    a("v_readfirstlane_b32 s12, v2")
    a("v_and_b32 v2, 31, v1")
    a("v_lshlrev_b32 v4, 4, v1")
    a("v_lshlrev_b32 v5, 3, v1")
    a(f"v_mul_u32_u24 v{T}, 36, v2")
    a(f"v_lshl_add_u32 v{T+1}, v3, 4, v{T}")
    a(f"v_lshl_add_u32 v{T+2}, v3, 30, v{T}")
    a(f"v_mul_u32_u24 v{T+3}, 304, v3")
    a(f"v_add_u32 v{T+6}, {18*16}, v{T+3}")
    a(f"v_lshl_add_u32 v{T+3}, v2, 4, v{T+3}")
    a(f"v_mov_b32 v{T+4}, {OOB}")
    a(f"v_cmp_gt_u32 vcc, 18, v2")
    a(f"v_cmp_eq_u32 s[30:31], 20, v2")
    a(f"v_lshlrev_b32 v{T+5}, 3, v2")
    for r in range(8): a(f"v_mov_b32 v{KF2+r}, 0x3f803f80")
    a(f"v_cndmask_b32 v{T+3}, v{T+4}, v{T+3}, vcc")
    a(f"v_cndmask_b32 v{T+3}, v{T+3}, v{T+6}, s[30:31]")
    a(f"v_mov_b32 v{QA2+1}, 0")
    a(f"v_mov_b32 v{QA2+2}, 0")
    a("s_lshl_b32 s13, s2, 3")
    a("s_add_u32 s13, s13, s12")
    a("s_mul_i32 s14, s13, 1152")
    a("s_lshl_b32 s15, s12, 13")
    a(f"s_add_u32 s15, s15, {WS_KF1}")
    a("s_add_u32 s16, s15, 4096")
    a("s_lshl_b32 s17, s12, 10")
    a(f"s_add_u32 s17, s17, {WS_KF2}")
    a("s_mul_i32 s18, s12, 9728")
    a(f"s_add_u32 s18, s18, {WS_VF}")
    a("s_add_u32 s19, s18, 2432")
    a("s_add_u32 s26, s18, 4864")
    a("s_add_u32 s27, s18, 7296")
    a("s_mov_b32 s22, 0")
    a("s_waitcnt lgkmcnt(0)")
    srd(a,8,4,WS_END)
    loads=[]
    def ld(tag,txt): loads.append(tag); a(txt)
    ld("Q1",f"buffer_load_dwordx4 {vr(QA1,4)}, v{T+1}, s[8:11], s14 offen")
    ld("Q2",f"buffer_load_dword v{QA2}, v{T+2}, s[8:11], s14 offen offset:32")
    def ldk(j): ld(f"K{j}",f"buffer_load_dwordx4 {vr(KF1+4*j,4)}, v4, s[8:11], s{15+(j>>2)} offen offset:{(j&3)*1024}")
    def ldv(j,m):
        so=[18,19,26,27][j>>1]
        ld(f"V{j}{m}",f"buffer_load_dwordx4 {vr(VF+8*j+4*m,4)}, v{T+3}, s[8:11], s{so} offen offset:{(j&1)*1216+m*608}")
    ldk(0)
    a("s_mov_b32 exec_hi, 0")
    for p in range(4): ld(f"K2{p}",f"buffer_load_dwordx2 {vr(KF2+2*p,2)}, v{T+5}, s[8:11], s17 offen offset:{p*256}")
    a("s_mov_b32 exec_hi, -1")
    for j in range(8):
        if j<7: ldk(j+1)
        ldv(j,0); ldv(j,1)
    NL=len(loads)
    waited=[-1]
    def need(tag):
        k=loads.index(tag)
        if k>waited[0]:
            a(f"s_waitcnt vmcnt({NL-1-k})"); waited[0]=k
    a(f"v_lshlrev_b32 v{T+6}, 2, v2")
    a("s_lshl_b32 s24, s12, 7")
    a(f"s_add_u32 s24, s24, {L_MAXB}")
    a(f"v_add_u32 v{T+6}, s24, v{T+6}")
    a(f"v_mov_b32 v{T+7}, 0xff800000")
    a(f"ds_write_b32 v{T+6}, v{T+7}")
    a(f"v_mov_b32 v{T+8}, 0")
    a(f"v_mov_b32 v{T+9}, {L_FLAG}")
    a(f"ds_write_b32 v{T+9}, v{T+8}")
    a("s_lshl_b32 s25, s12, 11")
    a(f"v_add_u32 v6, s25, v4")
    def qk(j,Sd,Q1,Q2):
        return [f"v_mfma_f32_32x32x16_bf16 {vr(Sd,16)}, {vr(KF1+4*j,4)}, {vr(Q1,4)}, 0",
                f"v_mfma_f32_32x32x8_bf16 {vr(Sd,16)}, {vr(KF2+2*(j>>1),2)}, {vr(Q2+2*(j&1),2)}, {vr(Sd,16)}"]
    need("K23")
    for t in qk(0,S0,QA1,QA2): a(t)
    a("s_nop 11")
    def maxtree(Sd,dst,first=True):
        a(f"v_max3_f32 v{T+9}, v{Sd}, v{Sd+1}, v{Sd+2}")
        a(f"v_max3_f32 v{T+10}, v{Sd+3}, v{Sd+4}, v{Sd+5}")
        a(f"v_max3_f32 v{T+11}, v{Sd+6}, v{Sd+7}, v{Sd+8}")
        a(f"v_max3_f32 v{T+12}, v{Sd+9}, v{Sd+10}, v{Sd+11}")
        a(f"v_max3_f32 v{T+13}, v{Sd+12}, v{Sd+13}, v{Sd+14}")
        a(f"v_max3_f32 v{T+9}, v{T+9}, v{T+10}, v{Sd+15}")
        a(f"v_max3_f32 v{T+11}, v{T+11}, v{T+12}, v{T+13}")
        if first: a(f"v_max_f32 v{dst}, v{T+9}, v{T+11}")
        else: a(f"v_max3_f32 v{dst}, v{T+9}, v{T+11}, v{dst}")
    def xhalf(r,tmp):
        a(f"v_mov_b32 v{tmp}, v{r}")
        a("s_nop 1")
        a(f"v_permlane32_swap_b32 v{r}, v{tmp}")
        a("s_nop 1")
        a(f"v_max_f32 v{r}, v{r}, v{tmp}")
    maxtree(S0,T+14)
    xhalf(T+14,T+15)
    a(f"v_add_f32 v{T+14}, 0x42480000, v{T+14}")
    a(f"v_and_b32 v{VM}, 0xffff0000, v{T+14}")
    a(f"v_xor_b32 v{T+14}, 0x80000000, v{VM}")
    a(f"v_lshrrev_b32 v{T+14}, 16, v{T+14}")
    a(f"v_mul_u32_u24 v{T+14}, v{T+14}, v3")
    a(f"v_or_b32 v{QA2}, v{QA2}, v{T+14}")
    a(f"v_mov_b32 v{QA2+3}, v{QA2}")
    a(f"ds_write_b128 v6, {vr(QA1,4)} offset:{L_QREC}")
    a(f"ds_write_b128 v6, {vr(QA2,4)} offset:{L_QREC+1024}")
    a.label("L_at_main")
    for t in qk(0,S0,QA1,QA2): a(t)
    a("s_mov_b32 s20, s12")
    a(f"s_mov_b32 s23, {L_SLOT-SLOT}")
    a("s_nop 10")
    def flush_addr():
        a(f"s_mul_i32 s24, s20, {7*SLOT}")
        a("s_add_u32 s24, s24, s23")
        a("v_add_u32 v7, s24, v4")
        a(f"v_add_u32 v{V7B}, s24, v5")
    flush=[f"ds_write_b128 v7, {vr(O,4)}", f"ds_write_b128 v7, {vr(O+4,4)} offset:1024", f"ds_write_b64 v{V7B}, {vr(O+8,2)} offset:2048"]
    def step(kind,C1,C2,N1,N2,prev_own=False):
        first=kind=="first"; last=kind=="last"
        Oc = OW if first else O
        for j in range(8):
            Sc=[S0,S1][j&1]; Sn=[S0,S1][(j+1)&1]
            e=lambda r: f"v_exp_f32 v{Sc+r}, v{Sc+r}"
            c=lambda k: f"v_cvt_pk_bf16_f32 v{P+k}, v{Sc+2*k}, v{Sc+2*k+1}"
            pj=(j-1)&7
            nq = qk(j+1,Sn,C1,C2) if j<7 else (None if last else qk(0,Sn,N1,N2))
            Op = Oc if j>0 else (OW if prev_own else O)
            doflush = (j==0 and not first and not prev_own)
            a(e(0)); a(e(1))
            if not (first and j==0):
                if first: need(f"V{pj}1")
                a(f"v_mfma_f32_32x32x16_bf16 {vr(Op,16)}, {vr(VF+8*pj+4,4)}, {vr(P+4,4)}, {vr(Op,16)}")
            a(e(2)); a(e(3)); a(c(0)); a(c(1))
            if j==0 and not first:
                if doflush: flush_addr()
                a("s_add_u32 s20, s20, 1")
                a("s_and_b32 s20, s20, 7")
                a(f"s_add_u32 s23, s23, {SLOT}")
            if j==7 and not last: a("s_waitcnt lgkmcnt(0)")
            if nq:
                if first and j<7: need(f"K{j+1}")
                a(nq[0])
            for r in range(4,8): a(e(r))
            a(c(2)); a(c(3))
            if nq: a(nq[1])
            fl=flush if doflush else []
            g2=[e(8),e(9),e(10),e(11),c(4),c(5)]
            for i,x in enumerate(g2):
                a(x)
                if i<len(fl): a(fl[i])
            if first: need(f"V{j}0")
            cin = "0" if j==0 else vr(Oc,16)
            a(f"v_mfma_f32_32x32x16_bf16 {vr(Oc,16)}, {vr(VF+8*j,4)}, {vr(P,4)}, {cin}")
            for r in range(12,16): a(e(r))
            a(c(6)); a(c(7))
            if not last and ((first and j==3) or (not first and j==1)):
                if first:
                    a("s_waitcnt lgkmcnt(0)")
                    a("s_barrier")
                a("s_add_u32 s24, s20, 1")
                a("s_and_b32 s24, s24, 7")
                a("s_lshl_b32 s24, s24, 11")
                a("v_add_u32 v6, s24, v4")
                a(f"ds_read_b128 {vr(N1,4)}, v6 offset:{L_QREC}")
                a(f"ds_read_b128 {vr(N2,4)}, v6 offset:{L_QREC+1024}")
    step("first",QA1,QA2,QB1,QB2)
    need(loads[-1])
    step("mid",QB1,QB2,QA1,QA2,prev_own=True)
    a("s_mov_b32 s21, 2")
    a.label("L_at_loop")
    step("mid",QA1,QA2,QB1,QB2)
    step("mid",QB1,QB2,QA1,QA2)
    a("s_sub_u32 s21, s21, 1")
    a("s_cmp_lg_u32 s21, 0")
    a("s_cbranch_scc1 L_at_loop")
    step("mid",QA1,QA2,QB1,QB2)
    step("last",QB1,QB2,None,None)
    flush_addr()
    a(f"v_mfma_f32_32x32x16_bf16 {vr(O,16)}, {vr(VF+8*7+4,4)}, {vr(P+4,4)}, {vr(O,16)}")
    a(f"s_mul_i32 s24, s12, {7*SLOT}")
    a(f"s_add_u32 s24, s24, {L_SLOT}")
    a(f"v_add_u32 v{T}, s24, v4")
    a(f"v_add_u32 v{T+1}, s24, v5")
    a(f"v_mul_u32_u24 v{T+2}, 36, v2")
    a(f"v_lshl_add_u32 v{T+3}, v3, 4, v{T+2}")
    a(f"v_lshl_add_u32 v{T+2}, v3, 30, v{T+2}")
    a(f"s_add_u32 s28, s14, {WS_O}")
    a(f"v_mov_b32 v{T+4}, 0x71800000")
    a(f"v_mov_b32 v{T+5}, 0x0d800000")
    a(f"v_mov_b32 v{T+7}, 0x7f800000")
    a("s_nop 1")
    for f in flush: a(f)
    a("s_waitcnt lgkmcnt(0)")
    a("s_barrier")
    R=S0
    for i in range(7):
        a(f"ds_read_b128 {vr(R+10*i,4)}, v{T} offset:{SLOT*i}")
        a(f"ds_read_b128 {vr(R+10*i+4,4)}, v{T} offset:{SLOT*i+1024}")
        a(f"ds_read_b64 {vr(R+10*i+8,2)}, v{T+1} offset:{SLOT*i+2048}")
    for i in range(7):
        a(f"s_waitcnt lgkmcnt({min(15,3*(6-i))})")
        for r in range(10): a(f"v_add_f32 v{OW+r}, v{OW+r}, v{R+10*i+r}")
    a(f"v_mov_b32 v{T+8}, v{OW+8}")
    a(f"v_mov_b32 v{T+9}, v{OW+8}")
    a("s_nop 1")
    a(f"v_permlane32_swap_b32 v{T+8}, v{T+9}")
    a("s_nop 1")
    a(f"v_rcp_f32 v{T+10}, v{T+9}")
    a("s_nop 0")
    for r in range(10): a(f"v_mul_f32 v{OW+r}, v{OW+r}, v{T+10}")
    for k in range(5): a(f"v_cvt_pk_bf16_f32 v{P+k}, v{OW+2*k}, v{OW+2*k+1}")
    a(f"buffer_store_dwordx4 {vr(P,4)}, v{T+3}, s[8:11], s28 offen")
    a(f"buffer_store_dword v{P+4}, v{T+2}, s[8:11], s28 offen offset:32")
    a(f"v_add_f32 v{T+6}, |v{OW}|, |v{OW+1}|")
    for r in range(2,10): a(f"v_add_f32 v{T+6}, |v{OW+r}|, v{T+6}")
    a(f"v_cmp_lt_f32 s[30:31], v{T+9}, v{T+4}")
    a(f"v_cmp_gt_f32 s[32:33], v{T+9}, v{T+5}")
    a(f"v_cmp_lt_f32 s[34:35], v{T+6}, v{T+7}")
    a("s_cmp_lg_u32 s22, 0")
    a("s_cbranch_scc1 L_at_end")
    a(f"v_mov_b32 v{T+8}, {L_FLAG}")
    a("s_and_b64 s[30:31], s[30:31], s[32:33]")
    a("s_and_b64 s[30:31], s[30:31], s[34:35]")
    a("s_cmp_eq_u64 s[30:31], -1")
    a("s_cbranch_scc1 L_at_ok")
    a(f"v_mov_b32 v{T+9}, 1")
    a(f"ds_write_b32 v{T+8}, v{T+9}")
    a.label("L_at_ok")
    a("s_waitcnt lgkmcnt(0)")
    a("s_barrier")
    a(f"ds_read_b32 v{T+9}, v{T+8}")
    a("s_waitcnt lgkmcnt(0)")
    a(f"v_readfirstlane_b32 s24, v{T+9}")
    a("s_nop 3")
    a("s_cmp_eq_u32 s24, 0")
    a("s_cbranch_scc1 L_at_end")
    a("s_waitcnt vmcnt(0)")
    a("s_mov_b32 s21, 0")
    a.label("L_at_slow")
    a("s_lshl_b32 s24, s21, 11")
    a("v_add_u32 v6, s24, v4")
    a(f"ds_read_b128 {vr(QB1,4)}, v6 offset:{L_QREC}")
    a(f"ds_read_b128 {vr(QB2,4)}, v6 offset:{L_QREC+1024}")
    a("s_waitcnt lgkmcnt(0)")
    for j in range(8):
        for t in qk(j,S0,QB1,QB2): a(t)
        a("s_nop 11")
        maxtree(S0,T+14,first=(j==0))
    xhalf(T+14,T+15)
    a("s_lshl_b32 s24, s21, 7")
    a(f"s_add_u32 s24, s24, {L_MAXB}")
    a(f"v_lshlrev_b32 v{T+6}, 2, v2")
    a(f"v_add_u32 v{T+6}, s24, v{T+6}")
    a(f"ds_max_f32 v{T+6}, v{T+14}")
    a("s_add_u32 s21, s21, 1")
    a("s_cmp_lt_u32 s21, 8")
    a("s_cbranch_scc1 L_at_slow")
    a("s_waitcnt lgkmcnt(0)")
    a("s_barrier")
    a("s_lshl_b32 s24, s12, 7")
    a(f"s_add_u32 s24, s24, {L_MAXB}")
    a(f"v_lshlrev_b32 v{T+6}, 2, v2")
    a(f"v_add_u32 v{T+6}, s24, v{T+6}")
    a(f"ds_read_b32 v{T+7}, v{T+6}")
    a("s_lshl_b32 s25, s12, 11")
    a(f"v_add_u32 v6, s25, v4")
    a(f"ds_read_b128 {vr(QA1,4)}, v6 offset:{L_QREC}")
    a(f"ds_read_b128 {vr(QA2,4)}, v6 offset:{L_QREC+1024}")
    a("s_waitcnt lgkmcnt(0)")
    a(f"v_add_f32 v{T+7}, v{T+7}, v{VM}")
    a(f"v_xor_b32 v{T+7}, 0x80000000, v{T+7}")
    a(f"v_and_b32 v{T+8}, 0xffff0000, v{T+7}")
    a(f"v_sub_f32 v{T+7}, v{T+7}, v{T+8}")
    a(f"v_and_b32 v{T+9}, 0xffff0000, v{T+7}")
    a(f"v_sub_f32 v{T+7}, v{T+7}, v{T+9}")
    a(f"v_lshrrev_b32 v{T+8}, 16, v{T+8}")
    a(f"v_or_b32 v{T+8}, v{T+8}, v{T+9}")
    a(f"v_lshrrev_b32 v{T+7}, 16, v{T+7}")
    a(f"v_cmp_eq_u32 vcc, 1, v3")
    a("s_nop 1")
    a(f"v_cndmask_b32 v{QA2}, v{QA2}, v{T+8}, vcc")
    a(f"v_cndmask_b32 v{QA2+3}, v{QA2+3}, v{T+8}, vcc")
    a(f"v_cndmask_b32 v{QA2+1}, v{QA2+1}, v{T+7}, vcc")
    a(f"v_cndmask_b32 v{QA2+2}, v{QA2+2}, v{T+7}, vcc")
    a(f"ds_write_b128 v6, {vr(QA2,4)} offset:{L_QREC+1024}")
    a("s_mov_b32 s22, 1")
    a("s_branch L_at_main")
    a.label("L_at_end")
    a("s_endpgm")
    return a.text(), kernel_desc(name,NV), f"; @launch kernel={name} grid=(256,1,1) block=(512,1,1) lds={LDS_BYTES}"

if __name__=="__main__":
    body,desc,launch=gen_attn()
    open("attn_only.s","w").write(launch+"\n.amdgcn_target \"amdgcn-amd-amdhsa--gfx950\"\n.text\n"+body+".section .rodata,\"a\"\n"+desc)
```

```python
from asmlib import *
import struct, math
def f32bits(x): return struct.unpack("<I",struct.pack("<f",x))[0]
C_SCALE=(18**-0.5)*math.log2(math.e)

XB=8
AF=80
ACC=152
T=216
GEMM_NV=240
WAVE_LDS=18432
GEMM_LDS=4*WAVE_LDS

def common_ids(a):
    a("v_and_b32 v1, 63, v0")
    a("v_lshrrev_b32 v2, 6, v0")
    a("v_lshrrev_b32 v3, 5, v1")
    a("v_readfirstlane_b32 s12, v2")
    a("v_and_b32 v2, 31, v1")
    a("v_lshlrev_b32 v4, 4, v1")

def tr_lane_parts(a):
    a("v_bfe_u32 v5, v1, 2, 2")
    a(f"v_and_b32 v{T}, 1, v1")
    a(f"v_bfe_u32 v{T+1}, v1, 1, 1")
    a(f"v_lshl_or_b32 v6, v{T}, 1, v{T+1}")
    a(f"v_bfe_u32 v{T}, v1, 4, 1")
    a(f"v_lshl_or_b32 v6, v{T}, 2, v6")

def mainloop_and_reduce(a, nper, swapV=False, tr_imm=None, addr=None):
    def trreads(ks):
        for t in range(2):
            for u in range(2):
                a(f"ds_read_b64_tr_b16 {vr(AF+8*ks+4*t+2*u,2)}, v{addr[t]} offset:{tr_imm(ks,u)}")
    def mfmas(ks):
        for t in range(2):
            for p in range(2):
                d=ACC+16*(2*t+p); cin="0" if ks==0 else vr(d,16)
                A=vr(AF+8*ks+4*t,4); B=vr(XB+8*ks+4*p,4)
                if swapV and t==1: A,B=B,A
                a(f"v_mfma_f32_32x32x16_bf16 {vr(d,16)}, {A}, {B}, {cin}")
    a(f"s_waitcnt vmcnt({nper(0)})")
    trreads(0)
    for ks in range(9):
        if ks<8:
            a(f"s_waitcnt vmcnt({nper(ks+1)})")
            trreads(ks+1)
            a("s_waitcnt lgkmcnt(4)")
        else:
            a("s_waitcnt lgkmcnt(0)")
        mfmas(ks)
    a(f"s_mul_i32 s24, s12, {WAVE_LDS}")
    a("v_add_u32 v7, s24, v4")
    a("s_lshl_b32 s25, s12, 12")
    a(f"v_add_u32 v{T}, s25, v4")
    a("s_nop 7")
    for i in range(16):
        a(f"ds_write_b128 v7, {vr(ACC+4*i,4)} offset:{1024*i}")
    a("s_waitcnt lgkmcnt(0)")
    a("s_barrier")
    for w in range(4):
        for qd in range(4):
            a(f"ds_read_b128 {vr(XB+16*w+4*qd,4)}, v{T} offset:{WAVE_LDS*w+1024*qd}")
    a("s_waitcnt lgkmcnt(8)")
    for r in range(16): a(f"v_add_f32 v{XB+r}, v{XB+r}, v{XB+16+r}")
    a("s_waitcnt lgkmcnt(0)")
    for r in range(16): a(f"v_add_f32 v{XB+32+r}, v{XB+32+r}, v{XB+48+r}")
    for r in range(16): a(f"v_add_f32 v{XB+r}, v{XB+r}, v{XB+32+r}")

def role_gemm_w(a, pfx, act_arg, act_ws_off, w_arg, out_arg, out_off, ostride, out_bytes, scale):
    a(f"s_load_dwordx2 s[4:5], s[0:1], {act_arg}")
    a(f"s_load_dwordx2 s[6:7], s[0:1], {w_arg}")
    a(f"s_load_dwordx2 s[36:37], s[0:1], {out_arg}")
    common_ids(a)
    tr_lane_parts(a)
    a("s_and_b32 s13, s2, 7")
    a("s_lshl_b32 s13, s13, 2")
    a("s_bfe_u32 s14, s2, 0x20003")
    a("s_add_u32 s13, s13, s14")
    a("s_lshr_b32 s14, s2, 5")
    a(f"v_lshrrev_b32 v{T+2}, 3, v1")
    a(f"v_mul_u32_u24 v{T+2}, 1152, v{T+2}")
    a(f"v_bfe_u32 v{T+3}, v1, 4, 1")
    a(f"v_lshlrev_b32 v{T+3}, 2, v{T+3}")
    a(f"v_and_b32 v{T+4}, 7, v1")
    a(f"v_xor_b32 v{T+3}, v{T+3}, v{T+4}")
    a(f"v_lshl_add_u32 v{T+2}, v{T+3}, 4, v{T+2}")
    a(f"v_mul_u32_u24 v{T+3}, 1152, v2")
    a(f"v_lshl_add_u32 v{T+3}, v3, 4, v{T+3}")
    a(f"v_lshl_add_u32 v{T+4}, v3, 3, v5")
    a(f"v_lshlrev_b32 v{T+4}, 7, v{T+4}")
    a(f"v_lshl_add_u32 v{T+4}, v6, 3, v{T+4}")
    a(f"v_lshrrev_b32 v{T+5}, 1, v5")
    a(f"v_lshl_add_u32 v{T+4}, v{T+5}, 6, v{T+4}")
    a(f"s_mul_i32 s15, s12, {WAVE_LDS}")
    a(f"v_add_u32 v{T+4}, s15, v{T+4}")
    a(f"v_xor_b32 v{T+5}, 64, v{T+4}")
    a(f"s_mul_i32 s16, s12, {144*1152}")
    a("s_lshl_b32 s17, s14, 7")
    a("s_add_u32 s16, s16, s17")
    a(f"s_mul_i32 s17, s13, {64*1152}")
    a(f"s_mul_i32 s18, s12, 288")
    a("s_add_u32 s17, s17, s18")
    if act_ws_off: a(f"s_add_u32 s17, s17, {act_ws_off}")
    a(f"s_add_u32 s18, s17, {32*1152}")
    a("s_waitcnt lgkmcnt(0)")
    srd(a,8,4,(WS_END if act_arg==96 else 2359296))
    srd(a,28,6,663552)
    srd(a,32,36,out_bytes)
    for ks in range(9):
        for i in (2*ks,2*ks+1):
            a(f"s_add_u32 m0, s15, {1024*i}")
            a("s_nop 0")
            a(f"buffer_load_dwordx4 v{T+2}, s[28:31], s16 offen lds")
            a("s_add_u32 s16, s16, 9216")
        for p in range(2):
            a(f"buffer_load_dwordx4 {vr(XB+8*ks+4*p,4)}, v{T+3}, s[8:11], s{17+p} offen offset:{32*ks}")
    mainloop_and_reduce(a, lambda ks:4*(8-ks), tr_imm=lambda ks,u: ks*2048+u*512, addr=[T+4,T+5])
    if scale is not None:
        a(f"s_mov_b32 s20, 0x{f32bits(scale):08x}")
        for r in range(16): a(f"v_mul_f32 v{XB+r}, s20, v{XB+r}")
    for k in range(8): a(f"v_cvt_pk_bf16_f32 v{AF+k}, v{XB+2*k}, v{XB+2*k+1}")
    a("s_and_b32 s21, s12, 1")
    a("s_lshl_b32 s21, s21, 5")
    a("s_lshl_b32 s22, s13, 6")
    a("s_add_u32 s21, s21, s22")
    a(f"s_mul_i32 s21, s21, {ostride}")
    a("s_lshr_b32 s22, s12, 1")
    a("s_lshl_b32 s22, s22, 6")
    a("s_add_u32 s21, s21, s22")
    a("s_lshl_b32 s22, s14, 7")
    a("s_add_u32 s21, s21, s22")
    if out_off: a(f"s_add_u32 s21, s21, {out_off}")
    a(f"v_mul_u32_u24 v{T}, {ostride}, v2")
    a(f"v_lshl_add_u32 v{T}, v3, 4, v{T}")
    a(f"buffer_store_dwordx4 {vr(AF,4)}, v{T}, s[32:35], s21 offen")
    a(f"buffer_store_dwordx4 {vr(AF+4,4)}, v{T}, s[32:35], s21 offen offset:32")
    a("s_endpgm")

def role_kv(a):
    a("s_load_dwordx2 s[4:5], s[0:1], 0")
    a("s_load_dwordx4 s[36:39], s[0:1], 16")
    a("s_load_dwordx2 s[6:7], s[0:1], 96")
    common_ids(a)
    tr_lane_parts(a)
    a(f"v_lshrrev_b32 v{T+2}, 2, v1")
    a(f"v_mul_u32_u24 v{T+2}, 36, v{T+2}")
    a(f"v_and_b32 v{T+3}, 3, v1")
    a(f"v_lshl_add_u32 v{T+2}, v{T+3}, 4, v{T+2}")
    a(f"v_mov_b32 v{T+4}, {OOB}")
    a(f"v_cmp_eq_u32 vcc, 3, v{T+3}")
    a(f"v_mul_u32_u24 v{T+3}, 1152, v2")
    a(f"v_lshl_add_u32 v{T+3}, v3, 4, v{T+3}")
    a(f"v_cndmask_b32 v{T+2}, v{T+2}, v{T+4}, vcc")
    a(f"v_lshl_add_u32 v{T+4}, v3, 3, v5")
    a(f"v_lshlrev_b32 v{T+4}, 6, v{T+4}")
    a(f"v_lshl_add_u32 v{T+4}, v6, 3, v{T+4}")
    a(f"s_mul_i32 s15, s12, {WAVE_LDS}")
    a(f"v_add_u32 v{T+4}, s15, v{T+4}")
    a(f"v_add_u32 v{T+5}, 1024, v{T+4}")
    a(f"s_mul_i32 s16, s12, {144*36}")
    a(f"s_mul_i32 s17, s2, {64*1152}")
    a(f"s_mul_i32 s18, s12, 288")
    a("s_add_u32 s17, s17, s18")
    a(f"s_add_u32 s18, s17, {32*1152}")
    a("s_waitcnt lgkmcnt(0)")
    srd(a,8,4,2359296)
    srd(a,28,36,20736)
    srd(a,40,38,20736)
    srd(a,32,6,WS_END)
    for ks in range(9):
        for t in range(2):
            a(f"s_add_u32 m0, s15, {2048*ks+1024*t}")
            a("s_nop 0")
            a(f"buffer_load_dwordx4 v{T+2}, {sr([28,40][t],4)}, s16 offen lds")
        a("s_add_u32 s16, s16, 576")
        for p in range(2):
            a(f"buffer_load_dwordx4 {vr(XB+8*ks+4*p,4)}, v{T+3}, s[8:11], s{17+p} offen offset:{32*ks}")
    mainloop_and_reduce(a, lambda ks:4*(8-ks), swapV=True, tr_imm=lambda ks,u: ks*2048+u*256, addr=[T+4,T+5])
    for k in range(8): a(f"v_cvt_pk_bf16_f32 v{AF+k}, v{XB+2*k}, v{XB+2*k+1}")
    a("s_and_b32 s21, s12, 1")
    a("s_lshl_b32 s22, s2, 1")
    a("s_add_u32 s22, s22, s21")
    a("s_cmp_ge_u32 s12, 2")
    a("s_cbranch_scc1 L_kv_v")
    a("s_lshl_b32 s23, s22, 10")
    a(f"s_add_u32 s23, s23, {WS_KF1}")
    a(f"buffer_store_dwordx4 {vr(AF,4)}, v4, s[32:35], s23 offen")
    a("s_lshl_b32 s23, s2, 8")
    a("s_lshl_b32 s21, s21, 2")
    a("s_add_u32 s23, s23, s21")
    a(f"s_add_u32 s23, s23, {WS_KF2}")
    a(f"v_lshlrev_b32 v{T}, 3, v2")
    a(f"v_lshl_add_u32 v{T}, v3, 30, v{T}")
    a(f"buffer_store_dword v{AF+4}, v{T}, s[32:35], s23 offen")
    a("s_endpgm")
    a.label("L_kv_v")
    a("v_cmp_eq_u32 vcc, 18, v2")
    a(f"v_mov_b32 v{T+1}, 0x3f803f80")
    a(f"v_mul_u32_u24 v{T}, 304, v3")
    a(f"v_lshl_add_u32 v{T}, v2, 4, v{T}")
    for k in range(8): a(f"v_cndmask_b32 v{AF+k}, v{AF+k}, v{T+1}, vcc")
    a("v_cmp_gt_u32 vcc, 19, v2")
    a(f"v_mov_b32 v{T+1}, {OOB}")
    a("s_mul_i32 s23, s22, 1216")
    a(f"s_add_u32 s23, s23, {WS_VF}")
    a(f"v_cndmask_b32 v{T}, v{T+1}, v{T}, vcc")
    a(f"buffer_store_dwordx4 {vr(AF,4)}, v{T}, s[32:35], s23 offen")
    a(f"buffer_store_dwordx4 {vr(AF+4,4)}, v{T}, s[32:35], s23 offen offset:608")
    a("s_endpgm")

def role_fold(a):
    L=8
    U=40
    a("s_load_dwordx2 s[4:5], s[0:1], 40")
    a("s_load_dwordx2 s[6:7], s[0:1], 96")
    a("s_lshl_b32 s3, s2, 8")
    a("v_add_u32 v1, s3, v0")
    a(f"s_mov_b32 s13, {(2**32+35)//36}")
    a("v_mul_hi_u32 v2, v1, s13")
    a("v_mul_u32_u24 v3, 36, v2")
    a("v_sub_u32 v3, v1, v3")
    a("v_lshlrev_b32 v3, 4, v3")
    a(f"v_mov_b32 v7, {OOB}")
    a("v_mul_u32_u24 v4, 1152, v2")
    a(f"v_add_u32 v{T}, v4, v3")
    a(f"v_sub_u32 v{T+1}, v3, v4")
    a(f"v_add_u32 v{T+2}, {1024*1152}, v{T+1}")
    a(f"v_add_u32 v{T+1}, {2048*1152}, v{T+1}")
    a(f"v_add_u32 v{T+3}, {1024*1152}, v{T}")
    a("v_cmp_lt_u32 vcc, 512, v2")
    a("s_movk_i32 s14, 512")
    a("v_cmp_le_u32 s[20:21], s14, v2")
    a("v_cmp_eq_u32 s[22:23], 0, v2")
    a("s_nop 0")
    a(f"v_cndmask_b32 v{T}, v{T}, v7, vcc")
    a(f"v_cndmask_b32 v{T+1}, v{T+1}, v7, vcc")
    a(f"v_cndmask_b32 v{T+2}, v{T+2}, v7, s[20:21]")
    a(f"v_cndmask_b32 v{T+3}, v{T+3}, v7, s[20:21]")
    a(f"v_cndmask_b32 v{T+3}, v{T+3}, v7, s[22:23]")
    a("v_mul_u32_u24 v5, 576, v2")
    a("v_add_u32 v5, v5, v3")
    a("v_cmp_le_u32 vcc, 544, v2")
    a("s_waitcnt lgkmcnt(0)")
    srd(a,8,4,2359296)
    srd(a,32,6,WS_END)
    a("v_cndmask_b32 v5, v5, v7, vcc")
    for r in range(4):
        for hf in range(2):
            a(f"buffer_load_dwordx4 {vr(L+8*r+4*hf,4)}, v{T+r}, s[8:11], 0 offen offset:{576*hf}")
    OUT=U+64
    a("s_waitcnt vmcnt(0)")
    for dw in range(4):
        res={}
        for part in range(2):
            x={}
            for r in range(4):
                for hf in range(2):
                    d=U+16*part+2*r+hf; src=L+8*r+4*hf+dw
                    if part==0: a(f"v_lshlrev_b32 v{d}, 16, v{src}")
                    else: a(f"v_and_b32 v{d}, 0xffff0000, v{src}")
                    x[r,hf]=d
            eo={}
            for r in range(4):
                e=U+16*part+8+2*r; o=e+1
                a(f"v_add_f32 v{e}, v{x[r,0]}, v{x[r,1]}")
                a(f"v_sub_f32 v{o}, v{x[r,0]}, v{x[r,1]}")
                eo[r,0]=e; eo[r,1]=o
            for par in range(2):
                b=U+16*part+4*par
                a(f"v_add_f32 v{b}, v{eo[0,par]}, v{eo[1,par]}")
                a(f"v_sub_f32 v{b+1}, v{eo[0,par]}, v{eo[1,par]}")
                a(f"v_add_f32 v{b+2}, v{eo[2,par]}, v{eo[3,par]}")
                a(f"v_sub_f32 v{b+3}, v{eo[2,par]}, v{eo[3,par]}")
                f=U+32+8*part+4*par
                a(f"v_add_f32 v{f}, v{b}, v{b+2}")
                a(f"v_sub_f32 v{f+1}, v{b}, v{b+2}")
                a(f"v_sub_f32 v{f+2}, v{b+1}, v{b+3}")
                a(f"v_add_f32 v{f+3}, v{b+1}, v{b+3}")
                for c in range(4): res[part,par,c]=f+c
        for c in range(4):
            for par in range(2):
                a(f"v_cvt_pk_bf16_f32 v{OUT+4*(2*c+par)+dw}, v{res[0,par,c]}, v{res[1,par,c]}")
    for c in range(4):
        for par in range(2):
            a(f"s_mov_b32 s20, {WS_XF+(2*c+par)*544*576}")
            a(f"buffer_store_dwordx4 {vr(OUT+4*(2*c+par),4)}, v5, s[32:35], s20 offen")
    a("s_endpgm")

def role_s1(a):
    A=8; B=80; D=152
    a("s_load_dwordx4 s[36:39], s[0:1], 64")
    a("s_load_dwordx2 s[6:7], s[0:1], 96")
    common_ids(a)
    a("s_nop 2")
    a("s_lshl_b32 s13, s2, 2")
    a("s_add_u32 s13, s13, s12")
    a(f"s_mul_hi_u32 s14, s13, {(2**32+39)//40}")
    a("s_mul_i32 s15, s14, 40")
    a("s_sub_u32 s15, s13, s15")
    a(f"s_mul_hi_u32 s16, s15, {(2**32+4)//5}")
    a("s_mul_i32 s17, s16, 5")
    a("s_sub_u32 s17, s15, s17")
    a(f"v_and_b32 v{T}, 0x13, v2")
    a(f"v_bfe_u32 v{T+1}, v2, 2, 1")
    a(f"v_lshl_or_b32 v{T}, v{T+1}, 3, v{T}")
    a(f"v_bfe_u32 v{T+1}, v2, 3, 1")
    a(f"v_lshl_or_b32 v{T}, v{T+1}, 2, v{T}")
    a(f"v_mul_u32_u24 v{T}, 576, v{T}")
    a(f"v_lshl_add_u32 v{T}, v3, 4, v{T}")
    a("s_mul_i32 s18, s16, 544")
    a("s_lshl_b32 s19, s14, 5")
    a("s_add_u32 s18, s18, s19")
    a("s_mul_i32 s18, s18, 576")
    a(f"s_add_u32 s18, s18, {WS_XF}")
    a(f"v_mul_u32_u24 v{T+1}, 2304, v2")
    a(f"v_lshl_add_u32 v{T+1}, v3, 4, v{T+1}")
    a("s_and_b32 s20, s16, 1")
    a("s_lshl_b32 s21, s17, 6")
    a("s_add_u32 s21, s21, s20")
    a("s_mul_i32 s19, s21, 1152")
    a("s_waitcnt lgkmcnt(0)")
    a("s_cmp_ge_u32 s16, 4")
    a("s_cselect_b32 s4, s38, s36")
    a("s_cselect_b32 s5, s39, s37")
    srd(a,8,4,663552)
    srd(a,32,6,WS_END)
    for ks in range(18):
        a(f"buffer_load_dwordx4 {vr(A+4*ks,4)}, v{T}, s[32:35], s18 offen offset:{32*ks}")
        a(f"buffer_load_dwordx4 {vr(B+4*ks,4)}, v{T+1}, s[8:11], s19 offen offset:{32*ks}")
    for ks in range(18):
        a(f"s_waitcnt vmcnt({2*(17-ks)})")
        a(f"v_mfma_f32_32x32x16_bf16 {vr(D,16)}, {vr(A+4*ks,4)}, {vr(B+4*ks,4)}, {'0' if ks==0 else vr(D,16)}")
    a("s_lshr_b32 s22, s16, 1")
    a("s_mul_i32 s22, s22, 320")
    a("s_add_u32 s22, s22, s21")
    a("s_mul_i32 s22, s22, 1088")
    a("s_lshl_b32 s23, s14, 6")
    a("s_add_u32 s22, s22, s23")
    a(f"s_add_u32 s22, s22, {WS_A1T}")
    a(f"v_mul_u32_u24 v{T}, 2176, v2")
    a(f"v_lshl_add_u32 v{T}, v3, 4, v{T}")
    a("s_nop 4")
    for k in range(8): a(f"v_cvt_pk_bf16_f32 v{A+k}, v{D+2*k}, v{D+2*k+1}")
    a(f"buffer_store_dwordx4 {vr(A,4)}, v{T}, s[32:35], s22 offen")
    a(f"buffer_store_dwordx4 {vr(A+4,4)}, v{T}, s[32:35], s22 offen offset:32")
    a("s_endpgm")

def role_s2(a):
    L=8
    D=212
    T=244
    a("s_load_dwordx4 s[36:39], s[0:1], 48")
    a("s_load_dwordx2 s[6:7], s[0:1], 96")
    a("s_load_dwordx2 s[40:41], s[0:1], 80")
    common_ids(a)
    a(f"s_mul_hi_u32 s13, s2, {(2**32+9)//10}")
    a("s_mul_i32 s14, s13, 10")
    a("s_sub_u32 s14, s2, s14")
    a("s_cmp_ge_u32 s13, 9")
    a("s_cselect_b32 s15, 1, 0")
    a("s_mul_i32 s16, s15, 9")
    a("s_sub_u32 s13, s13, s16")
    a("s_lshl_b32 s16, s13, 7")
    a("s_add_u32 s16, s16, s15")
    a("s_lshr_b32 s17, s12, 1")
    a("s_and_b32 s18, s12, 1")
    a(f"v_and_b32 v{T}, 0x13, v2")
    a(f"v_bfe_u32 v{T+1}, v2, 2, 1")
    a(f"v_lshl_or_b32 v{T}, v{T+1}, 3, v{T}")
    a(f"v_bfe_u32 v{T+1}, v2, 3, 1")
    a(f"v_lshl_or_b32 v{T}, v{T+1}, 2, v{T}")
    a(f"v_mul_u32_u24 v{T}, 1088, v{T}")
    a(f"v_lshl_add_u32 v{T}, v3, 4, v{T}")
    a("s_lshl_b32 s19, s17, 1")
    a("s_add_u32 s19, s19, s15")
    a("s_mul_i32 s19, s19, 320")
    a("s_lshl_b32 s20, s14, 5")
    a("s_add_u32 s19, s19, s20")
    a("s_mul_i32 s19, s19, 1088")
    a("s_mul_i32 s20, s18, 544")
    a("s_add_u32 s19, s19, s20")
    a(f"s_add_u32 s19, s19, {WS_A1T}")
    a(f"v_lshlrev_b32 v{T+1}, 13, v2")
    a(f"v_lshl_add_u32 v{T+1}, v3, 4, v{T+1}")
    a("s_lshl_b32 s21, s16, 12")
    a("s_add_u32 s21, s21, s20")
    a(f"s_add_u32 s22, s21, {64*4096}")
    a("s_waitcnt lgkmcnt(0)")
    a("s_cmp_eq_u32 s17, 1")
    a("s_cselect_b32 s4, s38, s36")
    a("s_cselect_b32 s5, s39, s37")
    srd(a,8,4,8388608)
    srd(a,32,6,WS_END)
    srd(a,44,40,4718592)
    for ks in range(17):
        a(f"buffer_load_dwordx4 {vr(L+12*ks,4)}, v{T}, s[32:35], s19 offen offset:{32*ks}")
        a(f"buffer_load_dwordx4 {vr(L+12*ks+4,4)}, v{T+1}, s[8:11], s21 offen offset:{32*ks}")
        a(f"buffer_load_dwordx4 {vr(L+12*ks+8,4)}, v{T+1}, s[8:11], s22 offen offset:{32*ks}")
    for ks in range(17):
        a(f"s_waitcnt vmcnt({3*(16-ks)})")
        for p in range(2):
            d=D+16*p
            a(f"v_mfma_f32_32x32x16_bf16 {vr(d,16)}, {vr(L+12*ks,4)}, {vr(L+12*ks+4+4*p,4)}, {'0' if ks==0 else vr(d,16)}")
    a("s_lshl_b32 s23, s12, 13")
    a("v_add_u32 v7, s23, v4")
    a("s_lshl_b32 s23, s12, 11")
    a(f"v_add_u32 v{T}, s23, v4")
    a("s_nop 8")
    for i in range(8): a(f"ds_write_b128 v7, {vr(D+4*i,4)} offset:{1024*i}")
    a("s_waitcnt lgkmcnt(0)")
    a("s_barrier")
    for w in range(4):
        for qd in range(2):
            a(f"ds_read_b128 {vr(L+8*w+4*qd,4)}, v{T} offset:{8192*w+1024*qd}")
    a("s_lshl_b32 s23, s17, 6")
    a("s_add_u32 s23, s23, s16")
    a(f"v_lshl_add_u32 v{T+1}, v2, 1, s23")
    a("s_lshl_b32 s24, s14, 5")
    a("s_lshl_b32 s25, s18, 4")
    a("s_add_u32 s24, s24, s25")
    a(f"v_lshl_add_u32 v{T+2}, v3, 3, s24")
    a(f"v_mul_u32_u24 v{T+3}, 2304, v{T+1}")
    a(f"v_sub_u32 v{T+4}, {2048*2304}, v{T+3}")
    a(f"v_mov_b32 v{T+5}, {OOB}")
    a(f"v_cmp_lt_u32 vcc, 1024, v{T+1}")
    a(f"v_add_u32 v{T+6}, -1, v{T+1}")
    a("s_movk_i32 s25, 1023")
    a(f"v_cmp_le_u32 s[26:27], s25, v{T+6}")
    a(f"v_lshlrev_b32 v{T+6}, 1, v{T+2}")
    a(f"v_cndmask_b32 v{T+3}, v{T+3}, v{T+5}, vcc")
    a(f"v_cndmask_b32 v{T+4}, v{T+4}, v{T+5}, s[26:27]")
    a(f"v_add_u32 v{T+7}, v{T+3}, v{T+6}")
    a(f"v_add_u32 v{T+8}, v{T+4}, v{T+6}")
    a(f"v_sub_u32 v{T+6}, {1152+(576-7)*2}, v{T+6}")
    a(f"v_add_u32 v{T+9}, v{T+3}, v{T+6}")
    a(f"v_add_u32 v{T+10}, v{T+4}, v{T+6}")
    a("s_waitcnt lgkmcnt(0)")
    for r in range(8): a(f"v_add_f32 v{L+r}, v{L+r}, v{L+8+r}")
    for r in range(8): a(f"v_add_f32 v{L+16+r}, v{L+16+r}, v{L+24+r}")
    for r in range(8): a(f"v_sub_f32 v{L+32+r}, v{L+r}, v{L+16+r}")
    for r in range(8): a(f"v_add_f32 v{L+40+r}, v{L+r}, v{L+16+r}")
    M=L+32; Pl=L+40; O=L+48
    for k in range(4): a(f"v_cvt_pk_bf16_f32 v{O+k}, v{M+2*k}, v{M+2*k+1}")
    for k in range(4): a(f"v_cvt_pk_bf16_f32 v{O+4+k}, v{Pl+2*k}, v{Pl+2*k+1}")
    for k in range(4): a(f"v_cvt_pk_bf16_f32 v{O+8+k}, v{Pl+7-2*k}, v{Pl+6-2*k}")
    for k in range(4): a(f"v_cvt_pk_bf16_f32 v{O+12+k}, v{M+7-2*k}, v{M+6-2*k}")
    RV=0
    a("s_cmp_eq_u32 s14, 9")
    a("s_cbranch_scc1 L_s2_e288")
    a(f"buffer_store_dwordx4 {vr(O,4)}, v{T+7}, s[44:47], 0 offen offset:1152")
    a(f"buffer_store_dwordx4 {vr(O+4,4)}, v{T+8}, s[44:47], 0 offen offset:1152")
    a("s_cmp_eq_u32 s24, 0")
    a("s_cbranch_scc1 L_s2_e0")
    a(f"buffer_store_dwordx4 {vr(O+8,4)}, v{T+9}, s[44:47], 0 offen offset:{RV}")
    a(f"buffer_store_dwordx4 {vr(O+12,4)}, v{T+10}, s[44:47], 0 offen offset:{RV}")
    a("s_endpgm")
    a.label("L_s2_e0")
    a(f"buffer_store_dwordx3 {vr(O+8,3)}, v{T+9}, s[44:47], 0 offen offset:{RV}")
    a(f"buffer_store_dwordx3 {vr(O+12,3)}, v{T+10}, s[44:47], 0 offen offset:{RV}")
    a(f"buffer_store_short v{O+11}, v{T+9}, s[44:47], 0 offen offset:{RV+12}")
    a(f"buffer_store_short v{O+15}, v{T+10}, s[44:47], 0 offen offset:{RV+12}")
    a("s_mov_b32 exec_lo, 0")
    a(f"buffer_store_short_d16_hi v{O+11}, v{T+9}, s[44:47], 0 offen offset:{RV+14}")
    a(f"buffer_store_short_d16_hi v{O+15}, v{T+10}, s[44:47], 0 offen offset:{RV+14}")
    a("s_endpgm")
    a.label("L_s2_e288")
    a("s_cmp_lg_u32 s18, 0")
    a("s_cbranch_scc1 L_s2_end")
    a("s_mov_b32 exec_hi, 0")
    a(f"buffer_store_short v{O}, v{T+7}, s[44:47], 0 offen offset:1152")
    a(f"buffer_store_short v{O+4}, v{T+8}, s[44:47], 0 offen offset:1152")
    a.label("L_s2_end")
    a("s_endpgm")
```

```python
from asmlib import *
from gen_gemm import *
import gen_attn
HDR=open("concat_heads__grouped_kv_mqa__spectral_fnet__prompt.s.ref").read().split("; Override launch")[0]
def multi(name, roles, nv, lds):
    a=Asm(); a.raw(kernel_header(name))
    tot=sum(c for c,_ in roles)
    a(f"s_cmp_ge_u32 s2, {tot}")
    a(f"s_cbranch_scc1 L_{name}_exit")
    base=0
    for i,(c,fn) in enumerate(roles[:-1]):
        base+=c
        a(f"s_cmp_lt_u32 s2, {c}")
        a(f"s_cbranch_scc1 L_{name}_r{i}")
        a(f"s_sub_u32 s2, s2, {c}")
    a(f"s_branch L_{name}_r{len(roles)-1}")
    a.label(f"L_{name}_exit")
    a("s_endpgm")
    for i,(c,fn) in enumerate(roles):
        a.label(f"L_{name}_r{i}")
        fn(a)
    return a.text(), kernel_desc(name,nv), f"; @launch kernel={name} grid=({tot},1,1) block=(256,1,1) lds={lds}"
qproj=lambda a: role_gemm_w(a,"q",0,0,8,96,WS_Q,1152,WS_END,C_SCALE)
oproj=lambda a: role_gemm_w(a,"o",96,WS_O,32,80,0,2304,4718592,None)
k1=multi("pre_kernel",[(32,role_kv),(288,qproj),(77,role_fold)],GEMM_NV,GEMM_LDS)
ks1=multi("s1_kernel",[(170,role_s1)],GEMM_NV,0)
k2=gen_attn.gen_attn("attn_kernel")
k3=multi("post_kernel",[(170,role_s2),(288,oproj)],256,GEMM_LDS)
ks=[k1,ks1,k2,k3]
txt=HDR+"\n".join(k[2] for k in ks)+"\n.amdgcn_target \"amdgcn-amd-amdhsa--gfx950\"\n.text\n"+"".join(k[0] for k in ks)+".section .rodata,\"a\"\n"+"".join(k[1] for k in ks)
import sys
out=sys.argv[1] if len(sys.argv)>1 else "concat_heads__grouped_kv_mqa__spectral_fnet__prompt.s"
open(out,"w").write(txt)
```

```python
def v(n): return f"v{n}"
def vr(n,c): return f"v[{n}:{n+c-1}]"
def s(n): return f"s{n}"
def sr(n,c): return f"s[{n}:{n+c-1}]"

class Asm:
    def __init__(self):
        self.lines=[]
    def __call__(self, txt):
        for l in txt.strip("\n").split("\n"):
            self.lines.append("    "+l.strip())
    def label(self, l): self.lines.append(f"{l}:")
    def comment(self, c): self.lines.append(f"    ; {c}")
    def raw(self, t): self.lines.append(t)
    def text(self): return "\n".join(self.lines)+"\n"

def kernel_header(name):
    return f""".globl {name}
.p2align 8
.type {name},@function
{name}:
"""
def kernel_desc(name, vgpr, sgpr=96):
    acc=(vgpr+3)//4*4
    return f""".p2align 6
.amdhsa_kernel {name}
  .amdhsa_next_free_vgpr {vgpr}
  .amdhsa_next_free_sgpr {sgpr}
  .amdhsa_accum_offset {acc}
  .amdhsa_group_segment_fixed_size 0
  .amdhsa_kernarg_size 104
  .amdhsa_user_sgpr_count 2
  .amdhsa_user_sgpr_kernarg_segment_ptr 1
  .amdhsa_system_sgpr_workgroup_id_x 1
.end_amdhsa_kernel
"""
def srd(a, d, b, nbytes):
    a(f"s_mov_b32 s{d}, s{b}")
    a(f"s_mov_b32 s{d+1}, s{b+1}")
    a(f"s_mov_b32 s{d+2}, {nbytes}")
    a(f"s_mov_b32 s{d+3}, 0x00020000")

WS_Q   = 0x000000
WS_KF1 = 0x240000
WS_KF2 = 0x250000
WS_VF  = 0x252000
WS_O   = 0x280000
WS_XF  = 0x4C0000
WS_A1T = 0x750000
WS_WOT = 0x8C0000
WS_HID = 0x970000
WS_SEQ = 0x9D0000
WS_END = 0xC00000
OOB = 0x40000000
```

```python
from asmlib import *
from gen_light import s1_decode, seq_decode

KF1=8; KF2=40; VF=48; S0=112; S1=128; P=144; O=152
QA1=168; QA2=172; QB1=176; QB2=180
OW=184
T=200
VM=216
V7B=217
VVO=218
SA=224
SVO=248
NV=252
L_QREC=0; L_SLOT=16384; SLOT=2560; L_MAXB=L_SLOT+56*SLOT; L_FLAG=L_MAXB+1024; LDS_BYTES=L_FLAG+16

def gen_attn(name="attn_kernel"):
    a=Asm()
    a.raw(kernel_header(name))
    a("s_cmp_ge_u32 s2, 256")
    a("s_cbranch_scc1 L_at_end")
    a("s_load_dwordx2 s[4:5], s[0:1], 96")
    a("s_load_dwordx4 s[60:63], s[0:1], 48")
    a("s_load_dwordx2 s[58:59], s[0:1], 32")
    a("v_and_b32 v1, 63, v0")
    a("v_lshrrev_b32 v2, 6, v0")
    a("v_lshrrev_b32 v3, 5, v1")
    a("v_readfirstlane_b32 s12, v2")
    a("v_and_b32 v2, 31, v1")
    a("v_lshlrev_b32 v4, 4, v1")
    a("v_lshlrev_b32 v5, 3, v1")
    a(f"v_mul_u32_u24 v{T}, 36, v2")
    a(f"v_lshl_add_u32 v{T+1}, v3, 4, v{T}")
    a(f"v_lshl_add_u32 v{T+2}, v3, 30, v{T}")
    a(f"v_mul_u32_u24 v{T+3}, 304, v3")
    a(f"v_add_u32 v{T+6}, {18*16}, v{T+3}")
    a(f"v_lshl_add_u32 v{T+3}, v2, 4, v{T+3}")
    a(f"v_mov_b32 v{T+4}, {OOB}")
    a(f"v_cmp_gt_u32 vcc, 18, v2")
    a(f"v_cmp_eq_u32 s[30:31], 20, v2")
    a(f"v_lshlrev_b32 v{T+5}, 3, v2")
    for r in range(8): a(f"v_mov_b32 v{KF2+r}, 0x3f803f80")
    a(f"v_cndmask_b32 v{T+3}, v{T+4}, v{T+3}, vcc")
    a(f"v_cndmask_b32 v{VVO}, v{T+3}, v{T+6}, s[30:31]")
    a(f"v_mov_b32 v{QA2+1}, 0")
    a(f"v_mov_b32 v{QA2+2}, 0")
    a("s_and_b32 s13, s2, 7")
    a("s_lshl_b32 s13, s13, 8")
    a("s_and_b32 s14, s2, 0xf8")
    a("s_add_u32 s13, s13, s14")
    a("s_add_u32 s13, s13, s12")
    a("s_mul_i32 s14, s13, 1152")
    a("s_lshr_b32 s24, s2, 3")
    a("s_add_u32 s25, s24, s12")
    a("s_and_b32 s25, s25, 7")
    a("s_lshl_b32 s25, s25, 2")
    a("s_lshr_b32 s24, s24, 3")
    for p in range(4):
        a(f"s_add_u32 s28, s24, {p}")
        a("s_and_b32 s28, s28, 3")
        a("s_add_u32 s28, s28, s25")
        a(f"s_lshl_b32 s{36+p}, s28, 11")
        a(f"s_add_u32 s{36+p}, s{36+p}, {WS_KF1}")
        a(f"s_lshl_b32 s{40+p}, s28, 8")
        a(f"s_add_u32 s{40+p}, s{40+p}, {WS_KF2}")
        a(f"s_mul_i32 s{44+p}, s28, 2432")
        a(f"s_add_u32 s{44+p}, s{44+p}, {WS_VF}")
    a("s_mov_b32 s22, 0")
    a("s_waitcnt lgkmcnt(0)")
    srd(a,8,4,WS_END)
    loads=[]
    def ld(tag,txt): loads.append(tag); a(txt)
    ld("Q1",f"buffer_load_dwordx4 {vr(QA1,4)}, v{T+1}, s[8:11], s14 offen")
    ld("Q2",f"buffer_load_dword v{QA2}, v{T+2}, s[8:11], s14 offen offset:32")
    def ldk(j): ld(f"K{j}",f"buffer_load_dwordx4 {vr(KF1+4*j,4)}, v4, s[8:11], s{36+(j>>1)} offen offset:{(j&1)*1024}")
    def ldv(j,m):
        ld(f"V{j}{m}",f"buffer_load_dwordx4 {vr(VF+8*j+4*m,4)}, v{VVO}, s[8:11], s{44+(j>>1)} offen offset:{(j&1)*1216+m*608}")
    ldk(0)
    a("s_mov_b32 exec_hi, 0")
    for p in range(4): ld(f"K2{p}",f"buffer_load_dwordx2 {vr(KF2+2*p,2)}, v{T+5}, s[8:11], s{40+p} offen")
    a("s_mov_b32 exec_hi, -1")
    a("s_setprio 3")
    a("s_barrier")
    nsample=len(loads)
    order=[("K",1),("V",0),("K",2),("V",1),("K",3)]
    inloop={j:([("V",j+2)] if j+2<8 else [])+([("K",j+4)] if j+4<8 else []) for j in range(8)}
    def emit(items,record=True):
        n0=len(loads)
        for k,j in items:
            if k=="K": ldk(j)
            else: ldv(j,0); ldv(j,1)
        if not record: del loads[n0:]
    a("s_cmp_ge_u32 s12, 4")
    a("s_cbranch_scc1 L_at_noup")
    emit(order,record=False)
    a.label("L_at_noup")
    waited=[-1]
    def need(tag):
        k=loads.index(tag)
        if k>waited[0]:
            a(f"s_waitcnt vmcnt({len(loads)-1-k})"); waited[0]=k
    a(f"v_lshlrev_b32 v{T+6}, 2, v2")
    a("s_lshl_b32 s24, s12, 7")
    a(f"s_add_u32 s24, s24, {L_MAXB}")
    a(f"v_add_u32 v{T+6}, s24, v{T+6}")
    a(f"v_mov_b32 v{T+7}, 0xff800000")
    a(f"ds_write_b32 v{T+6}, v{T+7}")
    a(f"v_mov_b32 v{T+8}, 0")
    a(f"v_mov_b32 v{T+9}, {L_FLAG}")
    a(f"ds_write_b32 v{T+9}, v{T+8}")
    a("s_lshl_b32 s25, s12, 11")
    a(f"v_add_u32 v6, s25, v4")
    def qk(j,Sd,Q1,Q2):
        return [f"v_mfma_f32_32x32x16_bf16 {vr(Sd,16)}, {vr(KF1+4*j,4)}, {vr(Q1,4)}, 0",
                f"v_mfma_f32_32x32x8_bf16 {vr(Sd,16)}, {vr(KF2+2*(j>>1),2)}, {vr(Q2+2*(j&1),2)}, {vr(Sd,16)}"]
    a("s_cmp_ge_u32 s12, 4")
    a("s_cbranch_scc1 L_at_w0")
    a("s_waitcnt vmcnt(7)")
    a("s_branch L_at_w1")
    a.label("L_at_w0")
    a("s_waitcnt vmcnt(0)")
    a.label("L_at_w1")
    waited[0]=nsample-1
    for t in qk(0,S0,QA1,QA2): a(t)
    a("s_nop 11")
    def maxtree(Sd,dst,first=True):
        a(f"v_max3_f32 v{T+9}, v{Sd}, v{Sd+1}, v{Sd+2}")
        a(f"v_max3_f32 v{T+10}, v{Sd+3}, v{Sd+4}, v{Sd+5}")
        a(f"v_max3_f32 v{T+11}, v{Sd+6}, v{Sd+7}, v{Sd+8}")
        a(f"v_max3_f32 v{T+12}, v{Sd+9}, v{Sd+10}, v{Sd+11}")
        a(f"v_max3_f32 v{T+13}, v{Sd+12}, v{Sd+13}, v{Sd+14}")
        a(f"v_max3_f32 v{T+9}, v{T+9}, v{T+10}, v{Sd+15}")
        a(f"v_max3_f32 v{T+11}, v{T+11}, v{T+12}, v{T+13}")
        if first: a(f"v_max_f32 v{dst}, v{T+9}, v{T+11}")
        else: a(f"v_max3_f32 v{dst}, v{T+9}, v{T+11}, v{dst}")
    def xhalf(r,tmp):
        a(f"v_mov_b32 v{tmp}, v{r}")
        a("s_nop 1")
        a(f"v_permlane32_swap_b32 v{r}, v{tmp}")
        a("s_nop 1")
        a(f"v_max_f32 v{r}, v{r}, v{tmp}")
    maxtree(S0,T+14)
    xhalf(T+14,T+15)
    a(f"v_add_f32 v{T+14}, 0x42c40000, v{T+14}")
    a(f"v_and_b32 v{VM}, 0xffff0000, v{T+14}")
    a(f"v_xor_b32 v{T+14}, 0x80000000, v{VM}")
    a(f"v_lshrrev_b32 v{T+14}, 16, v{T+14}")
    a(f"v_mul_u32_u24 v{T+14}, v{T+14}, v3")
    a(f"v_or_b32 v{QA2}, v{QA2}, v{T+14}")
    a(f"v_mov_b32 v{QA2+3}, v{QA2}")
    a(f"ds_write_b128 v6, {vr(QA1,4)} offset:{L_QREC}")
    a(f"ds_write_b128 v6, {vr(QA2,4)} offset:{L_QREC+1024}")
    a("s_cmp_lt_u32 s12, 4")
    a("s_cbranch_scc1 L_at_main")
    emit(order)
    a.label("L_at_main")
    for t in qk(0,S0,QA1,QA2): a(t)
    a("s_mov_b32 s20, s12")
    a(f"s_mov_b32 s23, {L_SLOT-SLOT}")
    a("s_setprio 2")
    a("s_nop 9")
    def flush_addr():
        a(f"s_mul_i32 s24, s20, {7*SLOT}")
        a("s_add_u32 s24, s24, s23")
        a("v_add_u32 v7, s24, v4")
        a(f"v_add_u32 v{V7B}, s24, v5")
    flush=[f"ds_write_b128 v7, {vr(O,4)}", f"ds_write_b128 v7, {vr(O+4,4)} offset:1024", f"ds_write_b64 v{V7B}, {vr(O+8,2)} offset:2048"]
    STG=[T,T+4,T+8,T+12,240,244]
    uid=[0]
    def s1_loads():
        for k in range(3):
            a(f"buffer_load_dwordx4 {vr(STG[2*k],4)}, v4, s[8:11], s53 offen offset:{1024*k}")
            a(f"buffer_load_dwordx4 {vr(STG[2*k+1],4)}, v4, s[8:11], s54 offen offset:{1024*k}")
        a("s_add_u32 s53, s53, 3072")
        a("s_add_u32 s54, s54, 3072")
    def hook_setup():
        a("s_mov_b32 s52, 0")
        a("s_and_b32 s15, s12, 3")
        a("s_lshr_b32 s16, s2, 3")
        a("s_cmp_eq_u32 s15, 3")
        a("s_cbranch_scc1 L_sj_pf")
        a("s_cmp_ge_u32 s12, 4")
        a("s_cbranch_scc1 L_sj_seq")
        a("s_cmp_ge_u32 s2, 240")
        a("s_cbranch_scc1 L_sj_done")
        a("s_mul_i32 s17, s2, 3")
        a("s_add_u32 s17, s17, s12")
        s1_decode(a,17,53,54,55,SVO,(T,T+1),(15,16,18,19,26))
        s1_loads()
        for r in range(16): a(f"v_mov_b32 v{SA+r}, 0")
        a("s_mov_b32 s52, 1")
        a("s_branch L_sj_done")
        a.label("L_sj_seq")
        a("s_mul_i32 s16, s16, 3")
        a("s_add_u32 s16, s16, s15")
        a("s_and_b32 s17, s2, 7")
        a("s_mul_i32 s18, s17, 9")
        a("s_add_u32 s18, s18, s16")
        a("s_sub_u32 s18, s18, 68")
        a("s_cmp_ge_u32 s16, 77")
        a("s_cbranch_scc1 L_sj_done")
        a("s_cmp_ge_u32 s16, 68")
        a("s_cselect_b32 s17, 8, s17")
        a("s_cselect_b32 s16, s18, s16")
        a("s_cmp_ge_u32 s16, 68")
        a("s_cbranch_scc1 L_sj_done")
        a(f"s_mul_hi_u32 s18, s16, {(2**32+16)//17}")
        a("s_mul_i32 s19, s18, 17")
        a("s_sub_u32 s19, s16, s19")
        a("s_lshl_b32 s17, s17, 1")
        a("s_and_b32 s26, s18, 1")
        a("s_add_u32 s17, s17, s26")
        a("s_lshr_b32 s18, s18, 1")
        seq_decode(a,17,18,19,53,55,(26,27))
        a("s_cmp_eq_u32 s18, 1")
        a("s_cselect_b32 s48, s62, s60")
        a("s_cselect_b32 s49, s63, s61")
        a("s_mov_b32 s50, 8388608")
        a("s_mov_b32 s51, 0x00020000")
        a(f"v_lshlrev_b32 v{SVO}, 13, v2")
        a(f"v_lshl_add_u32 v{SVO}, v3, 5, v{SVO}")
        a(f"buffer_load_dwordx4 {vr(T,4)}, v{SVO}, s[48:51], s53 offen")
        a(f"buffer_load_dwordx4 {vr(T+4,4)}, v{SVO}, s[48:51], s53 offen offset:16")
        a("s_mov_b32 s52, 2")
        a("s_branch L_sj_done")
        a.label("L_sj_pf")
        a("s_lshl_b32 s16, s16, 1")
        a("s_lshr_b32 s15, s12, 2")
        a("s_add_u32 s16, s16, s15")
        a("s_mul_i32 s16, s16, 10368")
        srd(a,48,58,663552)
        for k in range(11):
            a(f"buffer_load_dwordx4 {vr(T,4)}, v4, s[48:51], s16 offen offset:{1024*(k&3)}")
            if (k&3)==3: a("s_add_u32 s16, s16, 4096")
        a.label("L_sj_done")
    def hook_round():
        uid[0]+=1
        a("s_cmp_lg_u32 s52, 1")
        a(f"s_cbranch_scc1 L_sj_r{uid[0]}")
        a("s_waitcnt vmcnt(0)")
        for k in range(3):
            a(f"v_mfma_f32_32x32x16_bf16 {vr(SA,16)}, {vr(STG[2*k],4)}, {vr(STG[2*k+1],4)}, {vr(SA,16)}")
        s1_loads()
        a.label(f"L_sj_r{uid[0]}")
    def hook_final():
        a("s_waitcnt vmcnt(0)")
        a("s_cmp_eq_u32 s52, 0")
        a("s_cbranch_scc1 L_sj_fin")
        a("s_cmp_eq_u32 s52, 2")
        a("s_cbranch_scc1 L_sj_fseq")
        for k in range(8): a(f"v_cvt_pk_bf16_f32 v{T+k}, v{SA+2*k}, v{SA+2*k+1}")
        a(f"buffer_store_dwordx4 {vr(T,4)}, v{SVO}, s[8:11], s55 offen")
        a(f"buffer_store_dwordx4 {vr(T+4,4)}, v{SVO}, s[8:11], s55 offen offset:1024")
        a("s_branch L_sj_fin")
        a.label("L_sj_fseq")
        a("s_mov_b32 s15, 0x05040100")
        a("s_mov_b32 s16, 0x07060302")
        a("s_add_u32 s17, s55, 17408")
        for k in range(4):
            a(f"v_perm_b32 v{T+8+k}, v{T+1+2*k}, v{T+2*k}, s15")
            a(f"v_perm_b32 v{T+12+k}, v{T+1+2*k}, v{T+2*k}, s16")
        a(f"buffer_store_dwordx4 {vr(T+8,4)}, v4, s[8:11], s55 offen")
        a(f"buffer_store_dwordx4 {vr(T+12,4)}, v4, s[8:11], s17 offen")
        a.label("L_sj_fin")
    def step(kind,C1,C2,N1,N2,prev_own=False,hooks={}):
        first=kind=="first"; last=kind=="last"
        Oc = OW if first else O
        for j in range(8):
            Sc=[S0,S1][j&1]; Sn=[S0,S1][(j+1)&1]
            e=lambda r: f"v_exp_f32 v{Sc+r}, v{Sc+r}"
            c=lambda k: f"v_cvt_pk_bf16_f32 v{P+k}, v{Sc+2*k}, v{Sc+2*k+1}"
            pj=(j-1)&7
            nq = qk(j+1,Sn,C1,C2) if j<7 else (None if last else qk(0,Sn,N1,N2))
            Op = Oc if j>0 else (OW if prev_own else O)
            doflush = (j==0 and not first and not prev_own)
            if first: emit(inloop[j])
            a(e(0)); a(e(1))
            if not (first and j==0):
                if first: need(f"V{pj}1")
                a(f"v_mfma_f32_32x32x16_bf16 {vr(Op,16)}, {vr(VF+8*pj+4,4)}, {vr(P+4,4)}, {vr(Op,16)}")
            a(e(2)); a(e(3)); a(c(0)); a(c(1))
            if j==0 and not first:
                if doflush: flush_addr()
                a("s_add_u32 s20, s20, 1")
                a("s_and_b32 s20, s20, 7")
                a(f"s_add_u32 s23, s23, {SLOT}")
            if j==7 and not last: a("s_waitcnt lgkmcnt(0)")
            if nq:
                if first and j<7: need(f"K{j+1}")
                a(nq[0])
            for r in range(4,8): a(e(r))
            a(c(2)); a(c(3))
            if nq: a(nq[1])
            fl=flush if doflush else []
            g2=[e(8),e(9),e(10),e(11),c(4),c(5)]
            for i,x in enumerate(g2):
                a(x)
                if i<len(fl): a(fl[i])
            if first: need(f"V{j}0")
            cin = "0" if j==0 else vr(Oc,16)
            a(f"v_mfma_f32_32x32x16_bf16 {vr(Oc,16)}, {vr(VF+8*j,4)}, {vr(P,4)}, {cin}")
            for r in range(12,16): a(e(r))
            a(c(6)); a(c(7))
            if j in hooks: hooks[j]()
            if last and j==3: a("s_setprio 0")
            if not last and j==(4 if first else 1):
                if first:
                    a("s_waitcnt lgkmcnt(0)")
                    a("s_barrier")
                a("s_add_u32 s24, s20, 1")
                a("s_and_b32 s24, s24, 7")
                a("s_lshl_b32 s24, s24, 11")
                a("v_add_u32 v6, s24, v4")
                a(f"ds_read_b128 {vr(N1,4)}, v6 offset:{L_QREC}")
                a(f"ds_read_b128 {vr(N2,4)}, v6 offset:{L_QREC+1024}")
    step("first",QA1,QA2,QB1,QB2)
    need(loads[-1])
    step("mid",QB1,QB2,QA1,QA2,prev_own=True,hooks={5:hook_setup})
    a("s_mov_b32 s21, 2")
    a.label("L_at_loop")
    step("mid",QA1,QA2,QB1,QB2,hooks={2:hook_round,6:hook_round})
    step("mid",QB1,QB2,QA1,QA2,hooks={4:hook_round})
    a("s_sub_u32 s21, s21, 1")
    a("s_cmp_lg_u32 s21, 0")
    a("s_cbranch_scc1 L_at_loop")
    a("s_setprio 1")
    step("mid",QA1,QA2,QB1,QB2,hooks={3:hook_final})
    step("last",QB1,QB2,None,None)
    flush_addr()
    a(f"v_mfma_f32_32x32x16_bf16 {vr(O,16)}, {vr(VF+8*7+4,4)}, {vr(P+4,4)}, {vr(O,16)}")
    a(f"s_mul_i32 s24, s12, {7*SLOT}")
    a(f"s_add_u32 s24, s24, {L_SLOT}")
    a(f"v_add_u32 v{T}, s24, v4")
    a(f"v_add_u32 v{T+1}, s24, v5")
    a(f"v_lshlrev_b32 v{T+3}, 10, v2")
    a(f"v_lshl_add_u32 v{T+3}, v3, 9, v{T+3}")
    a(f"v_lshrrev_b32 v{T+2}, 2, v2")
    a(f"v_lshlrev_b32 v{T+2}, 9, v{T+2}")
    a(f"v_and_b32 v{T+6}, 3, v2")
    a(f"v_lshl_add_u32 v{T+2}, v{T+6}, 2, v{T+2}")
    a(f"v_lshl_add_u32 v{T+2}, v3, 30, v{T+2}")
    a("s_lshr_b32 s28, s13, 5")
    a("s_mul_i32 s28, s28, 36864")
    a("s_and_b32 s29, s13, 31")
    a("s_lshl_b32 s29, s29, 4")
    a("s_add_u32 s28, s28, s29")
    a(f"s_add_u32 s28, s28, {WS_O}")
    a("s_add_u32 s29, s28, 32768")
    a(f"v_mov_b32 v{T+4}, 0x71800000")
    a(f"v_mov_b32 v{T+5}, 0x1c800000")
    a(f"v_mov_b32 v{T+7}, 0x7f800000")
    a("s_nop 1")
    for f in flush: a(f)
    a("s_waitcnt lgkmcnt(0)")
    a("s_barrier")
    R=S0
    for i in range(7):
        a(f"ds_read_b128 {vr(R+10*i,4)}, v{T} offset:{SLOT*i}")
        a(f"ds_read_b128 {vr(R+10*i+4,4)}, v{T} offset:{SLOT*i+1024}")
        a(f"ds_read_b64 {vr(R+10*i+8,2)}, v{T+1} offset:{SLOT*i+2048}")
    for i in range(7):
        a(f"s_waitcnt lgkmcnt({min(15,3*(6-i))})")
        for r in range(10): a(f"v_add_f32 v{OW+r}, v{OW+r}, v{R+10*i+r}")
    a(f"v_mov_b32 v{T+8}, v{OW+8}")
    a(f"v_mov_b32 v{T+9}, v{OW+8}")
    a("s_nop 1")
    a(f"v_permlane32_swap_b32 v{T+8}, v{T+9}")
    a("s_nop 1")
    a(f"v_rcp_f32 v{T+10}, v{T+9}")
    a("s_nop 0")
    for r in range(10): a(f"v_mul_f32 v{OW+r}, v{OW+r}, v{T+10}")
    for k in range(5): a(f"v_cvt_pk_bf16_f32 v{P+k}, v{OW+2*k}, v{OW+2*k+1}")
    a(f"buffer_store_dwordx4 {vr(P,4)}, v{T+3}, s[8:11], s28 offen")
    a(f"buffer_store_dword v{P+4}, v{T+2}, s[8:11], s29 offen")
    a(f"v_add_f32 v{T+6}, |v{OW}|, |v{OW+1}|")
    for r in range(2,10): a(f"v_add_f32 v{T+6}, |v{OW+r}|, v{T+6}")
    a(f"v_cmp_lt_f32 s[30:31], v{T+9}, v{T+4}")
    a(f"v_cmp_gt_f32 s[32:33], v{T+9}, v{T+5}")
    a(f"v_cmp_lt_f32 s[34:35], v{T+6}, v{T+7}")
    a("s_cmp_lg_u32 s22, 0")
    a("s_cbranch_scc1 L_at_end")
    a(f"v_mov_b32 v{T+8}, {L_FLAG}")
    a("s_and_b64 s[30:31], s[30:31], s[32:33]")
    a("s_and_b64 s[30:31], s[30:31], s[34:35]")
    a("s_cmp_eq_u64 s[30:31], -1")
    a("s_cbranch_scc1 L_at_ok")
    a(f"v_mov_b32 v{T+9}, 1")
    a(f"ds_write_b32 v{T+8}, v{T+9}")
    a.label("L_at_ok")
    a("s_waitcnt lgkmcnt(0)")
    a("s_barrier")
    a(f"ds_read_b32 v{T+9}, v{T+8}")
    a("s_waitcnt lgkmcnt(0)")
    a(f"v_readfirstlane_b32 s24, v{T+9}")
    a("s_nop 3")
    a("s_cmp_eq_u32 s24, 0")
    a("s_cbranch_scc1 L_at_end")
    a("s_waitcnt vmcnt(0)")
    a("s_mov_b32 s21, 0")
    a.label("L_at_slow")
    a("s_lshl_b32 s24, s21, 11")
    a("v_add_u32 v6, s24, v4")
    a(f"ds_read_b128 {vr(QB1,4)}, v6 offset:{L_QREC}")
    a(f"ds_read_b128 {vr(QB2,4)}, v6 offset:{L_QREC+1024}")
    a("s_waitcnt lgkmcnt(0)")
    for j in range(8):
        for t in qk(j,S0,QB1,QB2): a(t)
        a("s_nop 11")
        maxtree(S0,T+14,first=(j==0))
    xhalf(T+14,T+15)
    a("s_lshl_b32 s24, s21, 7")
    a(f"s_add_u32 s24, s24, {L_MAXB}")
    a(f"v_lshlrev_b32 v{T+6}, 2, v2")
    a(f"v_add_u32 v{T+6}, s24, v{T+6}")
    a(f"ds_max_f32 v{T+6}, v{T+14}")
    a("s_add_u32 s21, s21, 1")
    a("s_cmp_lt_u32 s21, 8")
    a("s_cbranch_scc1 L_at_slow")
    a("s_waitcnt lgkmcnt(0)")
    a("s_barrier")
    a("s_lshl_b32 s24, s12, 7")
    a(f"s_add_u32 s24, s24, {L_MAXB}")
    a(f"v_lshlrev_b32 v{T+6}, 2, v2")
    a(f"v_add_u32 v{T+6}, s24, v{T+6}")
    a(f"ds_read_b32 v{T+7}, v{T+6}")
    a("s_lshl_b32 s25, s12, 11")
    a(f"v_add_u32 v6, s25, v4")
    a(f"ds_read_b128 {vr(QA1,4)}, v6 offset:{L_QREC}")
    a(f"ds_read_b128 {vr(QA2,4)}, v6 offset:{L_QREC+1024}")
    a("s_waitcnt lgkmcnt(0)")
    a(f"v_add_f32 v{T+7}, v{T+7}, v{VM}")
    a(f"v_xor_b32 v{T+7}, 0x80000000, v{T+7}")
    a(f"v_and_b32 v{T+8}, 0xffff0000, v{T+7}")
    a(f"v_sub_f32 v{T+7}, v{T+7}, v{T+8}")
    a(f"v_and_b32 v{T+9}, 0xffff0000, v{T+7}")
    a(f"v_sub_f32 v{T+7}, v{T+7}, v{T+9}")
    a(f"v_lshrrev_b32 v{T+8}, 16, v{T+8}")
    a(f"v_or_b32 v{T+8}, v{T+8}, v{T+9}")
    a(f"v_lshrrev_b32 v{T+7}, 16, v{T+7}")
    a(f"v_cmp_eq_u32 vcc, 1, v3")
    a("s_nop 1")
    a(f"v_cndmask_b32 v{QA2}, v{QA2}, v{T+8}, vcc")
    a(f"v_cndmask_b32 v{QA2+3}, v{QA2+3}, v{T+8}, vcc")
    a(f"v_cndmask_b32 v{QA2+1}, v{QA2+1}, v{T+7}, vcc")
    a(f"v_cndmask_b32 v{QA2+2}, v{QA2+2}, v{T+7}, vcc")
    a(f"ds_write_b128 v6, {vr(QA2,4)} offset:{L_QREC+1024}")
    a("s_mov_b32 s22, 1")
    a("s_branch L_at_main")
    a.label("L_at_end")
    a("s_endpgm")
    return a.text(), kernel_desc(name,NV), f"; @launch kernel={name} grid=(256,1,1) block=(512,1,1) lds={LDS_BYTES}"

if __name__=="__main__":
    body,desc,launch=gen_attn()
    open("attn_only.s","w").write(launch+"\n.amdgcn_target \"amdgcn-amd-amdhsa--gfx950\"\n.text\n"+body+".section .rodata,\"a\"\n"+desc)
```

```python
from asmlib import *
import struct, math
def f32bits(x): return struct.unpack("<I",struct.pack("<f",x))[0]
C_SCALE=(18**-0.5)*math.log2(math.e)

XB=8
AF=88
ACC=120
T=184
K1_NV=200
GEMM_LDS=73728

def common_ids(a):
    a("v_and_b32 v1, 63, v0")
    a("v_lshrrev_b32 v2, 6, v0")
    a("v_lshrrev_b32 v3, 5, v1")
    a("v_readfirstlane_b32 s12, v2")
    a("v_and_b32 v2, 31, v1")
    a("v_lshlrev_b32 v4, 4, v1")

def tr_lane_parts(a,T):
    a("v_bfe_u32 v5, v1, 2, 2")
    a(f"v_and_b32 v{T}, 1, v1")
    a(f"v_bfe_u32 v{T+1}, v1, 1, 1")
    a(f"v_lshl_or_b32 v6, v{T}, 1, v{T+1}")
    a(f"v_bfe_u32 v{T}, v1, 4, 1")
    a(f"v_lshl_or_b32 v6, v{T}, 2, v6")

def perm5(a,dst,src,tmp):
    a(f"v_and_b32 v{dst}, 0x13, v{src}")
    a(f"v_bfe_u32 v{tmp}, v{src}, 2, 1")
    a(f"v_lshl_or_b32 v{dst}, v{tmp}, 3, v{dst}")
    a(f"v_bfe_u32 v{tmp}, v{src}, 3, 1")
    a(f"v_lshl_or_b32 v{dst}, v{tmp}, 2, v{dst}")

def reduce4(a, acc, res, own_base_sgpr, bases, T):
    a(f"v_add_u32 v7, s{own_base_sgpr}, v4")
    a("s_lshl_b32 s25, s12, 12")
    a(f"v_add_u32 v{T}, s25, v4")
    a("s_nop 9")
    for i in range(16):
        a(f"ds_write_b128 v7, {vr(acc+4*i,4)} offset:{1024*i}")
    a("s_waitcnt lgkmcnt(0)")
    a("s_barrier")
    for w in range(4):
        for qd in range(4):
            a(f"ds_read_b128 {vr(res+16*w+4*qd,4)}, v{T} offset:{bases[w]+1024*qd}")
    a("s_waitcnt lgkmcnt(8)")
    for r in range(16): a(f"v_add_f32 v{res+r}, v{res+r}, v{res+16+r}")
    a("s_waitcnt lgkmcnt(0)")
    for r in range(16): a(f"v_add_f32 v{res+32+r}, v{res+32+r}, v{res+48+r}")
    for r in range(16): a(f"v_add_f32 v{res+r}, v{res+r}, v{res+32+r}")

def proj_core(a, pfx, kv):
    a("s_mul_i32 s14, s12, 9")
    a("s_lshr_b32 s14, s14, 1")
    a("s_lshl_b32 s15, s14, 12")
    a(f"v_add_u32 v{T+4}, s15, v{T+4}")
    a(f"v_add_u32 v{T+5}, s15, v{T+5}")
    a(f"v_lshrrev_b32 v{T+3}, 2, v1")
    a(f"v_mul_u32_u24 v{T+6}, 1152, v{T+3}")
    a(f"v_and_b32 v{T+7}, 3, v1")
    a(f"v_lshl_add_u32 v{T+6}, v{T+7}, 4, v{T+6}")
    a(f"v_lshlrev_b32 v{T+8}, 1, v{T+7}")
    a(f"v_xor_b32 v{T+8}, v{T+8}, v{T+3}")
    a(f"v_lshl_add_u32 v{T+8}, v{T+7}, 5, v{T+8}")
    a(f"v_lshlrev_b32 v{T+8}, 4, v{T+8}")
    a(f"v_add_u32 v{T+8}, s15, v{T+8}")
    for ks2 in range(2):
        a(f"v_lshlrev_b32 v{T+9+ks2}, 1, v3")
        if ks2: a(f"v_or_b32 v{T+9+ks2}, 4, v{T+9+ks2}")
        a(f"v_xor_b32 v{T+9+ks2}, v{T+9+ks2}, v2")
        a(f"v_lshl_add_u32 v{T+9+ks2}, v3, 5, v{T+9+ks2}")
        a(f"v_lshlrev_b32 v{T+9+ks2}, 4, v{T+9+ks2}")
        a(f"v_add_u32 v{T+9+ks2}, s15, v{T+9+ks2}")
    a(f"s_mul_i32 s17, s13, {64*1152}")
    a("s_lshl_b32 s18, s14, 6")
    a("s_add_u32 s17, s17, s18")
    for g in range(1,4): a(f"s_add_u32 s{17+g}, s17, {18432*g}")
    rowb = 36 if kv else 1152
    a(f"s_mul_i32 s21, s14, {32*rowb}")
    a("s_add_u32 s16, s16, s21")
    def issue(j):
        if j<4:
            a(f"s_add_u32 s22, s27, {j}")
            a("s_and_b32 s22, s22, 3")
        else:
            a("s_mov_b32 s22, 4")
        a(f"s_mul_i32 s23, s22, {32*rowb}")
        a("s_add_u32 s23, s23, s16")
        a("s_lshl_b32 s22, s22, 6")
        for i in range(4):
            a(f"s_add_u32 m0, s15, {4096*j+1024*i}")
            if kv:
                a(f"s_add_u32 s21, s23, {(16*(i>>1))*36}")
                a(f"buffer_load_dwordx4 v{T+2}, {sr([28,40][i&1],4)}, s21 offen lds")
            else:
                a(f"s_add_u32 s21, s23, {(8*i)*1152}")
                a(f"buffer_load_dwordx4 v{T+2}, s[28:31], s21 offen lds")
        for g in range(4):
            a(f"s_add_u32 s21, s{17+g}, s22")
            a(f"buffer_load_dwordx4 {vr(XB+16*j+4*g,4)}, v{T+6}, s[8:11], s21 offen")
    def dsops(j,buf):
        l=[]
        for ks2 in range(2):
            for t in range(2):
                for u in range(2):
                    imm=4096*j+2048*ks2+(256 if kv else 512)*u
                    l.append(f"ds_read_b64_tr_b16 {vr(AF+16*buf+8*ks2+4*t+2*u,2)}, v{T+4+t} offset:{imm}")
        for g in range(4):
            l.append(f"ds_write_b128 v{T+8}, {vr(XB+16*j+4*g,4)} offset:{4096*j+2048*(g>>1)+256*(g&1)}")
        for p in range(2):
            for ks2 in range(2):
                l.append(f"ds_read_b128 {vr(XB+16*j+8*ks2+4*p,4)}, v{T+9+ks2} offset:{4096*j+2048*p+1024*ks2}")
        return l
    def mf(j,buf):
        l=[]
        for ks2 in range(2):
            for t in range(2):
                for p in range(2):
                    d=ACC+16*(2*t+p)
                    A=vr(AF+16*buf+8*ks2+4*t,4); B=vr(XB+16*j+8*ks2+4*p,4)
                    if kv and t==1: A,B=B,A
                    l.append(f"v_mfma_f32_32x32x16_bf16 {vr(d,16)}, {A}, {B}, {vr(d,16)}")
        return l
    a("s_bitcmp1_b32 s12, 0")
    a(f"s_cbranch_scc0 L_{pfx}_i4")
    issue(4)
    a.label(f"L_{pfx}_i4")
    for j in range(4): issue(j)
    for r in range(64): a(f"v_mov_b32 v{ACC+r}, 0")
    a("s_bitcmp1_b32 s12, 0")
    a(f"s_cbranch_scc0 L_{pfx}_c4")
    a("s_waitcnt vmcnt(32)")
    for x in dsops(4,1): a(x)
    a("s_waitcnt lgkmcnt(0)")
    for x in mf(4,1): a(x)
    a.label(f"L_{pfx}_c4")
    a("s_waitcnt vmcnt(24)")
    for x in dsops(0,0): a(x)
    for j in range(4):
        a("s_waitcnt lgkmcnt(0)")
        m=mf(j,j&1)
        if j<3:
            a(f"s_waitcnt vmcnt({8*(2-j)})")
            d=dsops(j+1,(j+1)&1)
            for i,x in enumerate(m):
                a(x); a(d[2*i]); a(d[2*i+1])
        else:
            for x in m: a(x)
    reduce4(a,ACC,XB,15,[0,4*4096,9*4096,13*4096],T)

def role_qproj(a):
    a("s_load_dwordx4 s[4:7], s[0:1], 0")
    a("s_load_dwordx2 s[36:37], s[0:1], 96")
    common_ids(a)
    tr_lane_parts(a,T)
    a("s_and_b32 s13, s2, 7")
    a("s_lshl_b32 s13, s13, 2")
    a("s_bfe_u32 s14, s2, 0x20003")
    a("s_add_u32 s13, s13, s14")
    a("s_lshr_b32 s26, s2, 5")
    a(f"v_lshrrev_b32 v{T+2}, 3, v1")
    a(f"v_mul_u32_u24 v{T+2}, 1152, v{T+2}")
    a(f"v_bfe_u32 v{T+3}, v1, 4, 1")
    a(f"v_lshlrev_b32 v{T+3}, 2, v{T+3}")
    a(f"v_and_b32 v{T+4}, 7, v1")
    a(f"v_xor_b32 v{T+3}, v{T+3}, v{T+4}")
    a(f"v_lshl_add_u32 v{T+2}, v{T+3}, 4, v{T+2}")
    a(f"v_lshl_add_u32 v{T+4}, v3, 3, v5")
    a(f"v_lshlrev_b32 v{T+4}, 7, v{T+4}")
    a(f"v_lshl_add_u32 v{T+4}, v6, 3, v{T+4}")
    a(f"v_lshrrev_b32 v{T+5}, 1, v5")
    a(f"v_lshl_add_u32 v{T+4}, v{T+5}, 6, v{T+4}")
    a(f"v_xor_b32 v{T+5}, 64, v{T+4}")
    a("s_lshl_b32 s16, s26, 7")
    a("s_add_u32 s27, s14, s26")
    a("s_waitcnt lgkmcnt(0)")
    srd(a,8,4,2359296)
    srd(a,28,6,663552)
    srd(a,32,36,WS_END)
    proj_core(a,"qp",False)
    a(f"s_mov_b32 s20, 0x{f32bits(C_SCALE):08x}")
    for r in range(16): a(f"v_mul_f32 v{XB+r}, s20, v{XB+r}")
    for k in range(8): a(f"v_cvt_pk_bf16_f32 v{AF+k}, v{XB+2*k}, v{XB+2*k+1}")
    out_tile_store(a,13,26,1152,WS_Q,AF,T)

def out_tile_store(a,sqb,snb,ostride,out_off,R,T):
    a("s_and_b32 s21, s12, 1")
    a("s_lshl_b32 s21, s21, 5")
    a(f"s_lshl_b32 s22, s{sqb}, 6")
    a("s_add_u32 s21, s21, s22")
    a(f"s_mul_i32 s21, s21, {ostride}")
    a("s_lshr_b32 s22, s12, 1")
    a("s_lshl_b32 s22, s22, 6")
    a("s_add_u32 s21, s21, s22")
    a(f"s_lshl_b32 s22, s{snb}, 7")
    a("s_add_u32 s21, s21, s22")
    if out_off: a(f"s_add_u32 s21, s21, {out_off}")
    a(f"v_mul_u32_u24 v{T}, {ostride}, v2")
    a(f"v_lshl_add_u32 v{T}, v3, 4, v{T}")
    a(f"buffer_store_dwordx4 {vr(R,4)}, v{T}, s[32:35], s21 offen")
    a(f"buffer_store_dwordx4 {vr(R+4,4)}, v{T}, s[32:35], s21 offen offset:32")
    a("s_endpgm")

def role_kv(a):
    a("s_load_dwordx2 s[4:5], s[0:1], 0")
    a("s_load_dwordx4 s[36:39], s[0:1], 16")
    a("s_load_dwordx2 s[6:7], s[0:1], 96")
    common_ids(a)
    tr_lane_parts(a,T)
    a(f"v_lshrrev_b32 v{T+2}, 2, v1")
    a(f"v_mul_u32_u24 v{T+2}, 36, v{T+2}")
    a(f"v_and_b32 v{T+3}, 3, v1")
    a(f"v_lshl_add_u32 v{T+2}, v{T+3}, 4, v{T+2}")
    a(f"v_mov_b32 v{T+4}, {OOB}")
    a(f"v_cmp_eq_u32 vcc, 3, v{T+3}")
    a("s_and_b32 s13, s2, 7")
    a("s_lshl_b32 s13, s13, 2")
    a("s_lshr_b32 s27, s2, 3")
    a("s_add_u32 s13, s13, s27")
    a("s_mov_b32 s2, s13")
    a("s_add_u32 s27, s27, 1")
    a("s_mov_b32 s16, 0")
    a(f"v_cndmask_b32 v{T+2}, v{T+2}, v{T+4}, vcc")
    a(f"v_lshl_add_u32 v{T+4}, v3, 3, v5")
    a(f"v_lshlrev_b32 v{T+4}, 6, v{T+4}")
    a(f"v_lshl_add_u32 v{T+4}, v6, 3, v{T+4}")
    a(f"v_add_u32 v{T+5}, 1024, v{T+4}")
    a("s_waitcnt lgkmcnt(0)")
    srd(a,8,4,2359296)
    srd(a,28,36,20736)
    srd(a,40,38,20736)
    srd(a,32,6,WS_END)
    proj_core(a,"kv",True)
    a("s_cmp_ge_u32 s12, 2")
    a("s_cselect_b32 s20, 0x53800000, 1.0")
    for r in range(16): a(f"v_mul_f32 v{XB+r}, s20, v{XB+r}")
    for k in range(8): a(f"v_cvt_pk_bf16_f32 v{AF+k}, v{XB+2*k}, v{XB+2*k+1}")
    a("s_and_b32 s21, s12, 1")
    a("s_lshl_b32 s22, s2, 1")
    a("s_add_u32 s22, s22, s21")
    a("s_cmp_ge_u32 s12, 2")
    a("s_cbranch_scc1 L_kv_v")
    a("s_lshl_b32 s23, s22, 10")
    a(f"s_add_u32 s23, s23, {WS_KF1}")
    a(f"buffer_store_dwordx4 {vr(AF,4)}, v4, s[32:35], s23 offen")
    a("s_lshl_b32 s23, s2, 8")
    a("s_lshl_b32 s21, s21, 2")
    a("s_add_u32 s23, s23, s21")
    a(f"s_add_u32 s23, s23, {WS_KF2}")
    a(f"v_lshlrev_b32 v{T}, 3, v2")
    a(f"v_lshl_add_u32 v{T}, v3, 30, v{T}")
    a(f"buffer_store_dword v{AF+4}, v{T}, s[32:35], s23 offen")
    a("s_endpgm")
    a.label("L_kv_v")
    a("v_cmp_eq_u32 vcc, 18, v2")
    a(f"v_mov_b32 v{T+1}, 0x53805380")
    a(f"v_mul_u32_u24 v{T}, 304, v3")
    a(f"v_lshl_add_u32 v{T}, v2, 4, v{T}")
    for k in range(8): a(f"v_cndmask_b32 v{AF+k}, v{AF+k}, v{T+1}, vcc")
    a("v_cmp_gt_u32 vcc, 19, v2")
    a(f"v_mov_b32 v{T+1}, {OOB}")
    a("s_mul_i32 s23, s22, 1216")
    a(f"s_add_u32 s23, s23, {WS_VF}")
    a(f"v_cndmask_b32 v{T}, v{T+1}, v{T}, vcc")
    a(f"buffer_store_dwordx4 {vr(AF,4)}, v{T}, s[32:35], s23 offen")
    a(f"buffer_store_dwordx4 {vr(AF+4,4)}, v{T}, s[32:35], s23 offen offset:608")
    a("s_endpgm")

def role_fold(a):
    L=8; U=40
    a("s_load_dwordx2 s[4:5], s[0:1], 40")
    a("s_load_dwordx2 s[6:7], s[0:1], 96")
    a("s_lshl_b32 s3, s2, 8")
    a("v_add_u32 v1, s3, v0")
    a(f"s_mov_b32 s13, {(2**32+35)//36}")
    a("v_mul_hi_u32 v2, v1, s13")
    a("v_mul_u32_u24 v3, 36, v2")
    a("v_sub_u32 v6, v1, v3")
    a("v_lshlrev_b32 v3, 4, v6")
    a(f"v_mov_b32 v7, {OOB}")
    a("v_mul_u32_u24 v4, 1152, v2")
    a(f"v_add_u32 v{T}, v4, v3")
    a(f"v_sub_u32 v{T+1}, v3, v4")
    a(f"v_add_u32 v{T+2}, {1024*1152}, v{T+1}")
    a(f"v_add_u32 v{T+1}, {2048*1152}, v{T+1}")
    a(f"v_add_u32 v{T+3}, {1024*1152}, v{T}")
    a("v_cmp_lt_u32 vcc, 512, v2")
    a("s_movk_i32 s14, 512")
    a("v_cmp_le_u32 s[20:21], s14, v2")
    a("v_cmp_eq_u32 s[22:23], 0, v2")
    a("s_nop 0")
    a(f"v_cndmask_b32 v{T}, v{T}, v7, vcc")
    a(f"v_cndmask_b32 v{T+1}, v{T+1}, v7, vcc")
    a(f"v_cndmask_b32 v{T+2}, v{T+2}, v7, s[20:21]")
    a(f"v_cndmask_b32 v{T+3}, v{T+3}, v7, s[20:21]")
    a(f"v_cndmask_b32 v{T+3}, v{T+3}, v7, s[22:23]")
    perm5(a,T+4,2,T+5)
    a(f"v_lshrrev_b32 v5, 5, v2")
    a("v_mul_u32_u24 v5, 18432, v5")
    a("v_lshl_add_u32 v5, v6, 9, v5")
    a(f"v_lshl_add_u32 v5, v{T+4}, 4, v5")
    a("v_cmp_le_u32 vcc, 544, v2")
    a("s_waitcnt lgkmcnt(0)")
    srd(a,8,4,2359296)
    srd(a,32,6,WS_END)
    a("v_cndmask_b32 v5, v5, v7, vcc")
    for r in range(4):
        for hf in range(2):
            a(f"buffer_load_dwordx4 {vr(L+8*r+4*hf,4)}, v{T+r}, s[8:11], 0 offen offset:{576*hf}")
    OUT=U+64
    a("s_waitcnt vmcnt(0)")
    for dw in range(4):
        res={}
        for part in range(2):
            x={}
            for r in range(4):
                for hf in range(2):
                    d=U+16*part+2*r+hf; src=L+8*r+4*hf+dw
                    if part==0: a(f"v_lshlrev_b32 v{d}, 16, v{src}")
                    else: a(f"v_and_b32 v{d}, 0xffff0000, v{src}")
                    x[r,hf]=d
            eo={}
            for r in range(4):
                e=U+16*part+8+2*r; o=e+1
                a(f"v_add_f32 v{e}, v{x[r,0]}, v{x[r,1]}")
                a(f"v_sub_f32 v{o}, v{x[r,0]}, v{x[r,1]}")
                eo[r,0]=e; eo[r,1]=o
            for par in range(2):
                b=U+16*part+4*par
                a(f"v_add_f32 v{b}, v{eo[0,par]}, v{eo[1,par]}")
                a(f"v_sub_f32 v{b+1}, v{eo[0,par]}, v{eo[1,par]}")
                a(f"v_add_f32 v{b+2}, v{eo[2,par]}, v{eo[3,par]}")
                a(f"v_sub_f32 v{b+3}, v{eo[2,par]}, v{eo[3,par]}")
                f=U+32+8*part+4*par
                a(f"v_add_f32 v{f}, v{b}, v{b+2}")
                a(f"v_sub_f32 v{f+1}, v{b}, v{b+2}")
                a(f"v_sub_f32 v{f+2}, v{b+1}, v{b+3}")
                a(f"v_add_f32 v{f+3}, v{b+1}, v{b+3}")
                for c in range(4): res[part,par,c]=f+c
        for c in range(4):
            for par in range(2):
                a(f"v_cvt_pk_bf16_f32 v{OUT+4*(2*c+par)+dw}, v{res[0,par,c]}, v{res[1,par,c]}")
    for c in range(4):
        for par in range(2):
            a(f"s_mov_b32 s20, {WS_XF+(2*c+par)*17*18432}")
            a(f"buffer_store_dwordx4 {vr(OUT+4*(2*c+par),4)}, v5, s[32:35], s20 offen")
    a("s_endpgm")

def role_relayout(a, pfx, arg, rowbytes, matbytes, ntile_per_trig, tile_row0, units, upw, dst):
    groups=(units+upw-1)//upw
    ntask=2*ntile_per_trig*groups
    a(f"s_load_dwordx4 s[36:39], s[0:1], {arg}")
    a("s_load_dwordx2 s[6:7], s[0:1], 96")
    common_ids(a)
    a("s_nop 2")
    a("s_lshl_b32 s13, s2, 2")
    a("s_add_u32 s13, s13, s12")
    a(f"s_cmp_ge_u32 s13, {ntask}")
    a(f"s_cbranch_scc1 L_{pfx}_end")
    a(f"s_mul_hi_u32 s14, s13, {(2**32+groups-1)//groups}")
    a(f"s_mul_i32 s17, s14, {groups}")
    a("s_sub_u32 s17, s13, s17")
    a(f"s_cmp_ge_u32 s14, {ntile_per_trig}")
    a("s_cselect_b32 s18, 1, 0")
    a(f"s_mul_i32 s15, s18, {ntile_per_trig}")
    a("s_sub_u32 s15, s14, s15")
    tile_row0(a)
    a(f"v_lshrrev_b32 v{T}, 2, v1")
    a(f"v_and_b32 v{T+1}, 3, v1")
    a(f"v_mul_u32_u24 v{T+2}, {2*rowbytes}, v{T}")
    a(f"v_lshl_add_u32 v{T+2}, v{T+1}, 4, v{T+2}")
    a(f"v_lshlrev_b32 v{T+3}, 9, v{T+1}")
    a(f"v_lshl_add_u32 v{T+3}, v{T}, 4, v{T+3}")
    a(f"s_mul_i32 s19, s16, {rowbytes}")
    a(f"s_mul_i32 s20, s17, {upw*64}")
    a("s_add_u32 s19, s19, s20")
    a(f"s_add_u32 s20, s19, {32*rowbytes}")
    a(f"s_mul_i32 s21, s14, {units*2048}")
    a(f"s_mul_i32 s22, s17, {upw*2048}")
    a("s_add_u32 s21, s21, s22")
    a(f"s_add_u32 s21, s21, {dst}")
    a("s_waitcnt lgkmcnt(0)")
    a("s_cmp_eq_u32 s18, 1")
    a("s_cselect_b32 s4, s38, s36")
    a("s_cselect_b32 s5, s39, s37")
    srd(a,8,4,matbytes)
    srd(a,32,6,WS_END)
    last=units-(groups-1)*upw
    for u in range(upw):
        for g in range(2):
            a(f"buffer_load_dwordx4 {vr(8+8*u+4*g,4)}, v{T+2}, s[8:11], s{19+g} offen offset:{64*u}")
    for u in range(upw):
        if u==last and last<upw:
            a(f"s_cmp_eq_u32 s17, {groups-1}")
            a(f"s_cbranch_scc1 L_{pfx}_end")
        for g in range(2):
            a(f"s_waitcnt vmcnt({2*upw-1})")
            a(f"buffer_store_dwordx4 {vr(8+8*u+4*g,4)}, v{T+3}, s[32:35], s21 offen offset:{256*g}")
        a("s_add_u32 s21, s21, 2048")
    a.label(f"L_{pfx}_end")
    a("s_endpgm")
    return (ntask+3)//4

def hid_row0(a):
    a("s_cmp_ge_u32 s15, 5")
    a("s_cselect_b32 s23, 1, 0")
    a("s_mul_i32 s16, s23, 5")
    a("s_sub_u32 s16, s15, s16")
    a("s_lshl_b32 s16, s16, 6")
    a("s_add_u32 s16, s16, s23")
def seq_row0(a):
    a("s_cmp_ge_u32 s15, 18")
    a("s_cselect_b32 s23, 1, 0")
    a("s_mul_i32 s16, s23, 18")
    a("s_sub_u32 s16, s15, s16")
    a("s_lshl_b32 s16, s16, 6")
    a("s_add_u32 s16, s16, s23")
role_hid=lambda a: role_relayout(a,"hid",64,1152,663552,10,hid_row0,9,3,WS_HID)
HID_WGS=(2*10*3+3)//4
role_seq=lambda a: role_relayout(a,"seq",48,4096,8388608,34,seq_row0,17,3,WS_SEQ)
SEQ_WGS=(2*34*6+3)//4

def role_wot(a):
    a("s_load_dwordx2 s[6:7], s[0:1], 32")
    a("s_load_dwordx2 s[36:37], s[0:1], 96")
    common_ids(a)
    tr_lane_parts(a,T)
    a(f"v_lshrrev_b32 v{T+2}, 3, v1")
    a(f"v_mul_u32_u24 v{T+2}, 1152, v{T+2}")
    a(f"v_and_b32 v{T+4}, 7, v1")
    a(f"v_lshl_add_u32 v{T+2}, v{T+4}, 4, v{T+2}")
    a(f"s_mul_i32 s15, s12, 18432")
    a(f"s_mul_i32 s16, s12, {144*1152}")
    a("s_lshl_b32 s17, s2, 7")
    a("s_add_u32 s16, s16, s17")
    a("s_waitcnt lgkmcnt(0)")
    srd(a,28,6,663552)
    srd(a,32,36,WS_END)
    for i in range(18):
        a(f"s_add_u32 m0, s15, {1024*i}")
        a(f"s_add_u32 s21, s16, {9216*i}")
        a(f"buffer_load_dwordx4 v{T+2}, s[28:31], s21 offen lds")
    a(f"v_lshl_add_u32 v{T+4}, v3, 3, v5")
    a(f"v_lshlrev_b32 v{T+4}, 7, v{T+4}")
    a(f"v_lshl_add_u32 v{T+4}, v6, 3, v{T+4}")
    a(f"v_add_u32 v{T+4}, s15, v{T+4}")
    a(f"v_lshrrev_b32 v{T+5}, 1, v5")
    a(f"v_lshl_add_u32 v{T+5}, v3, 2, v{T+5}")
    a(f"v_mul_u32_u24 v{T+5}, 18, v{T+5}")
    a(f"v_and_b32 v{T+6}, 1, v5")
    a(f"v_add3_u32 v{T+5}, v{T+5}, v{T+6}, 16")
    a(f"v_lshlrev_b32 v{T+5}, 7, v{T+5}")
    a(f"v_lshl_add_u32 v{T+5}, v6, 3, v{T+5}")
    a(f"v_add_u32 v{T+5}, s15, v{T+5}")
    a("s_waitcnt vmcnt(0)")
    for t in range(2):
        for c in range(9):
            for u in range(2):
                d=8+4*(9*t+c)+2*u
                if c<8: a(f"ds_read_b64_tr_b16 {vr(d,2)}, v{T+4} offset:{c*18*128+u*512+t*64}")
                else: a(f"ds_read_b64_tr_b16 {vr(d,2)}, v{T+5} offset:{u*36*128+t*64}")
    a("s_lshl_b32 s20, s2, 1")
    a(f"s_mul_i32 s20, s20, 36864")
    a(f"s_add_u32 s20, s20, {WS_WOT}")
    a("s_lshl_b32 s21, s12, 13")
    a("s_add_u32 s21, s21, s20")
    a("s_lshl_b32 s22, s12, 10")
    a("s_add_u32 s22, s22, s20")
    a("s_add_u32 s22, s22, 32768")
    a("s_waitcnt lgkmcnt(0)")
    for t in range(2):
        for c in range(9):
            d=8+4*(9*t+c)
            if c<8:
                a(f"s_add_u32 s23, s21, {t*36864+(c>>2)*4096}")
                a(f"buffer_store_dwordx4 {vr(d,4)}, v4, s[32:35], s23 offen offset:{(c&3)*1024}")
            else:
                a(f"s_add_u32 s23, s22, {t*36864}")
                a(f"buffer_store_dwordx4 {vr(d,4)}, v4, s[32:35], s23 offen")
    a("s_endpgm")

def role_s1(a):
    A=8; B=80; D=152
    a("s_load_dwordx2 s[6:7], s[0:1], 96")
    common_ids(a)
    a("s_nop 2")
    a("s_lshl_b32 s13, s2, 2")
    a("s_add_u32 s13, s13, s12")
    a(f"s_mul_hi_u32 s14, s13, {(2**32+39)//40}")
    a("s_mul_i32 s15, s14, 40")
    a("s_sub_u32 s15, s13, s15")
    a(f"s_mul_hi_u32 s16, s15, {(2**32+4)//5}")
    a("s_mul_i32 s17, s16, 5")
    a("s_sub_u32 s17, s15, s17")
    a("s_mul_i32 s18, s16, 17")
    a("s_add_u32 s18, s18, s14")
    a("s_mul_i32 s18, s18, 18432")
    a(f"s_add_u32 s18, s18, {WS_XF}")
    a("s_and_b32 s20, s16, 1")
    a("s_lshr_b32 s21, s16, 2")
    a("s_lshl_b32 s19, s21, 1")
    a("s_add_u32 s19, s19, s20")
    a("s_mul_i32 s19, s19, 5")
    a("s_add_u32 s19, s19, s17")
    a("s_mul_i32 s19, s19, 18432")
    a(f"s_add_u32 s19, s19, {WS_HID}")
    a("s_waitcnt lgkmcnt(0)")
    srd(a,32,6,WS_END)
    for ks in range(18):
        a(f"buffer_load_dwordx4 {vr(A+4*ks,4)}, v4, s[32:35], s18 offen offset:{1024*(ks&3)}")
        a(f"buffer_load_dwordx4 {vr(B+4*ks,4)}, v4, s[32:35], s19 offen offset:{1024*(ks&3)}")
        if (ks&3)==3:
            a("s_add_u32 s18, s18, 4096"); a("s_add_u32 s19, s19, 4096")
    a(f"v_and_b32 v{T}, 15, v2")
    a(f"v_lshl_add_u32 v{T}, v{T}, 1, s20")
    perm5(a,T+1,T,T+2)
    a(f"v_lshlrev_b32 v{T+1}, 4, v{T+1}")
    a(f"v_lshl_add_u32 v{T+1}, v3, 9, v{T+1}")
    a(f"v_lshrrev_b32 v{T}, 4, v2")
    a(f"v_mul_u32_u24 v{T}, 34816, v{T}")
    a(f"v_add_u32 v{T+1}, v{T+1}, v{T}")
    a("s_lshr_b32 s22, s16, 1")
    a("s_mul_i32 s22, s22, 10")
    a("s_lshl_b32 s23, s17, 1")
    a("s_add_u32 s22, s22, s23")
    a("s_mul_i32 s22, s22, 34816")
    a("s_lshl_b32 s23, s14, 11")
    a("s_add_u32 s22, s22, s23")
    a(f"s_add_u32 s22, s22, {WS_A1T}")
    for ks in range(18):
        a(f"s_waitcnt vmcnt({2*(17-ks)})")
        a(f"v_mfma_f32_32x32x16_bf16 {vr(D,16)}, {vr(A+4*ks,4)}, {vr(B+4*ks,4)}, {'0' if ks==0 else vr(D,16)}")
    a("s_nop 11")
    for k in range(8): a(f"v_cvt_pk_bf16_f32 v{A+k}, v{D+2*k}, v{D+2*k+1}")
    a(f"buffer_store_dwordx4 {vr(A,4)}, v{T+1}, s[32:35], s22 offen")
    a(f"buffer_store_dwordx4 {vr(A+4,4)}, v{T+1}, s[32:35], s22 offen offset:1024")
    a("s_endpgm")

def role_oproj(a):
    L=8; ACC=152; T=216
    a("s_load_dwordx2 s[6:7], s[0:1], 96")
    a("s_load_dwordx2 s[36:37], s[0:1], 80")
    common_ids(a)
    a("s_and_b32 s13, s2, 7")
    a("s_lshl_b32 s13, s13, 2")
    a("s_bfe_u32 s14, s2, 0x20003")
    a("s_add_u32 s13, s13, s14")
    a("s_lshr_b32 s26, s2, 5")
    a("s_mul_i32 s15, s12, 9216")
    a("s_mul_i32 s16, s26, 73728")
    a("s_add_u32 s16, s16, s15")
    a(f"s_add_u32 s16, s16, {WS_WOT}")
    a("s_add_u32 s17, s16, 36864")
    a("s_mul_i32 s18, s13, 73728")
    a("s_add_u32 s18, s18, s15")
    a(f"s_add_u32 s18, s18, {WS_O}")
    a("s_add_u32 s19, s18, 36864")
    a("s_lshl_b32 s15, s12, 14")
    a("s_waitcnt lgkmcnt(0)")
    srd(a,8,6,WS_END)
    srd(a,32,36,4718592)
    for ks in range(9):
        for i in range(4):
            a(f"buffer_load_dwordx4 {vr(L+16*ks+4*i,4)}, v4, s[8:11], s{16+i} offen offset:{1024*(ks&3)}")
        if (ks&3)==3:
            for i in range(4): a(f"s_add_u32 s{16+i}, s{16+i}, 4096")
    for ks in range(9):
        a(f"s_waitcnt vmcnt({4*(8-ks)})")
        for t in range(2):
            for p in range(2):
                d=ACC+16*(2*t+p)
                a(f"v_mfma_f32_32x32x16_bf16 {vr(d,16)}, {vr(L+16*ks+4*t,4)}, {vr(L+16*ks+8+4*p,4)}, {'0' if ks==0 else vr(d,16)}")
    reduce4(a,ACC,L,15,[0,16384,32768,49152],T)
    for k in range(8): a(f"v_cvt_pk_bf16_f32 v{L+64+k}, v{L+2*k}, v{L+2*k+1}")
    out_tile_store(a,13,26,2304,0,L+64,T)

def role_s2(a):
    L=8; D=212; T=244
    a("s_load_dwordx2 s[6:7], s[0:1], 96")
    a("s_load_dwordx2 s[40:41], s[0:1], 80")
    common_ids(a)
    a(f"s_mul_hi_u32 s13, s2, {(2**32+9)//10}")
    a("s_mul_i32 s14, s13, 10")
    a("s_sub_u32 s14, s2, s14")
    a("s_cmp_ge_u32 s13, 9")
    a("s_cselect_b32 s15, 1, 0")
    a("s_mul_i32 s16, s15, 9")
    a("s_sub_u32 s16, s13, s16")
    a("s_lshl_b32 s16, s16, 7")
    a("s_add_u32 s16, s16, s15")
    a("s_lshr_b32 s17, s12, 1")
    a("s_and_b32 s18, s12, 1")
    a("s_mul_i32 s20, s18, 17408")
    a("s_lshl_b32 s19, s17, 1")
    a("s_add_u32 s19, s19, s15")
    a("s_mul_i32 s19, s19, 10")
    a("s_add_u32 s19, s19, s14")
    a("s_mul_i32 s19, s19, 34816")
    a("s_add_u32 s19, s19, s20")
    a(f"s_add_u32 s19, s19, {WS_A1T}")
    a("s_mul_i32 s21, s17, 34")
    a("s_lshl_b32 s22, s13, 1")
    a("s_add_u32 s21, s21, s22")
    a("s_mul_i32 s21, s21, 34816")
    a("s_add_u32 s21, s21, s20")
    a(f"s_add_u32 s20, s21, {WS_SEQ}")
    a("s_add_u32 s21, s20, 34816")
    a("s_waitcnt lgkmcnt(0)")
    srd(a,32,6,WS_END)
    srd(a,44,40,4718592)
    for ks in range(17):
        for i in range(3):
            a(f"buffer_load_dwordx4 {vr(L+12*ks+4*i,4)}, v4, s[32:35], s{19+i} offen offset:{1024*(ks&3)}")
        if (ks&3)==3:
            for i in range(3): a(f"s_add_u32 s{19+i}, s{19+i}, 4096")
    for ks in range(17):
        a(f"s_waitcnt vmcnt({3*(16-ks)})")
        for p in range(2):
            d=D+16*p
            a(f"v_mfma_f32_32x32x16_bf16 {vr(d,16)}, {vr(L+12*ks,4)}, {vr(L+12*ks+4+4*p,4)}, {'0' if ks==0 else vr(d,16)}")
    a("s_lshl_b32 s23, s12, 13")
    a("v_add_u32 v7, s23, v4")
    a("s_lshl_b32 s23, s12, 11")
    a(f"v_add_u32 v{T}, s23, v4")
    a("s_nop 8")
    for i in range(8): a(f"ds_write_b128 v7, {vr(D+4*i,4)} offset:{1024*i}")
    a("s_waitcnt lgkmcnt(0)")
    a("s_barrier")
    for w in range(4):
        for qd in range(2):
            a(f"ds_read_b128 {vr(L+8*w+4*qd,4)}, v{T} offset:{8192*w+1024*qd}")
    a("s_lshl_b32 s23, s17, 6")
    a("s_add_u32 s23, s23, s16")
    a(f"v_lshl_add_u32 v{T+1}, v2, 1, s23")
    a("s_lshl_b32 s24, s14, 5")
    a("s_lshl_b32 s25, s18, 4")
    a("s_add_u32 s24, s24, s25")
    a(f"v_lshl_add_u32 v{T+2}, v3, 3, s24")
    a(f"v_mul_u32_u24 v{T+3}, 2304, v{T+1}")
    a(f"v_sub_u32 v{T+4}, {2048*2304}, v{T+3}")
    a(f"v_mov_b32 v{T+5}, {OOB}")
    a(f"v_cmp_lt_u32 vcc, 1024, v{T+1}")
    a(f"v_add_u32 v{T+6}, -1, v{T+1}")
    a("s_movk_i32 s25, 1023")
    a(f"v_cmp_le_u32 s[26:27], s25, v{T+6}")
    a(f"v_lshlrev_b32 v{T+6}, 1, v{T+2}")
    a(f"v_cndmask_b32 v{T+3}, v{T+3}, v{T+5}, vcc")
    a(f"v_cndmask_b32 v{T+4}, v{T+4}, v{T+5}, s[26:27]")
    a(f"v_add_u32 v{T+7}, v{T+3}, v{T+6}")
    a(f"v_add_u32 v{T+8}, v{T+4}, v{T+6}")
    a(f"v_sub_u32 v{T+6}, {1152+(576-7)*2}, v{T+6}")
    a(f"v_add_u32 v{T+9}, v{T+3}, v{T+6}")
    a(f"v_add_u32 v{T+10}, v{T+4}, v{T+6}")
    a("s_waitcnt lgkmcnt(0)")
    for r in range(8): a(f"v_add_f32 v{L+r}, v{L+r}, v{L+8+r}")
    for r in range(8): a(f"v_add_f32 v{L+16+r}, v{L+16+r}, v{L+24+r}")
    for r in range(8): a(f"v_sub_f32 v{L+32+r}, v{L+r}, v{L+16+r}")
    for r in range(8): a(f"v_add_f32 v{L+40+r}, v{L+r}, v{L+16+r}")
    M=L+32; Pl=L+40; O=L+48
    for k in range(4): a(f"v_cvt_pk_bf16_f32 v{O+k}, v{M+2*k}, v{M+2*k+1}")
    for k in range(4): a(f"v_cvt_pk_bf16_f32 v{O+4+k}, v{Pl+2*k}, v{Pl+2*k+1}")
    for k in range(4): a(f"v_cvt_pk_bf16_f32 v{O+8+k}, v{Pl+7-2*k}, v{Pl+6-2*k}")
    for k in range(4): a(f"v_cvt_pk_bf16_f32 v{O+12+k}, v{M+7-2*k}, v{M+6-2*k}")
    a("s_cmp_eq_u32 s14, 9")
    a("s_cbranch_scc1 L_s2_e288")
    a(f"buffer_store_dwordx4 {vr(O,4)}, v{T+7}, s[44:47], 0 offen offset:1152")
    a(f"buffer_store_dwordx4 {vr(O+4,4)}, v{T+8}, s[44:47], 0 offen offset:1152")
    a("s_cmp_eq_u32 s24, 0")
    a("s_cbranch_scc1 L_s2_e0")
    a(f"buffer_store_dwordx4 {vr(O+8,4)}, v{T+9}, s[44:47], 0 offen")
    a(f"buffer_store_dwordx4 {vr(O+12,4)}, v{T+10}, s[44:47], 0 offen")
    a("s_endpgm")
    a.label("L_s2_e0")
    a(f"buffer_store_dwordx3 {vr(O+8,3)}, v{T+9}, s[44:47], 0 offen")
    a(f"buffer_store_dwordx3 {vr(O+12,3)}, v{T+10}, s[44:47], 0 offen")
    a(f"buffer_store_short v{O+11}, v{T+9}, s[44:47], 0 offen offset:12")
    a(f"buffer_store_short v{O+15}, v{T+10}, s[44:47], 0 offen offset:12")
    a("s_mov_b32 exec_lo, 0")
    a(f"buffer_store_short_d16_hi v{O+11}, v{T+9}, s[44:47], 0 offen offset:14")
    a(f"buffer_store_short_d16_hi v{O+15}, v{T+10}, s[44:47], 0 offen offset:14")
    a("s_endpgm")
    a.label("L_s2_e288")
    a("s_cmp_lg_u32 s18, 0")
    a("s_cbranch_scc1 L_s2_end")
    a("s_mov_b32 exec_hi, 0")
    a(f"buffer_store_short v{O}, v{T+7}, s[44:47], 0 offen offset:1152")
    a(f"buffer_store_short v{O+4}, v{T+8}, s[44:47], 0 offen offset:1152")
    a.label("L_s2_end")
    a("s_endpgm")
```

```python
from asmlib import *
from gen_gemm import common_ids, tr_lane_parts, perm5
T=120

WT=" nt"
def mk_fold(nw):
    nwg=(324+nw-1)//nw
    def role(a):
        L=8; U=40
        a("s_load_dwordx2 s[4:5], s[0:1], 40")
        a("s_load_dwordx2 s[6:7], s[0:1], 96")
        a("v_and_b32 v1, 63, v0")
        a("v_lshrrev_b32 v2, 6, v0")
        a("v_lshrrev_b32 v3, 2, v1")
        a("v_readfirstlane_b32 s12, v2")
        a("v_and_b32 v4, 3, v1")
        a(f"v_mov_b32 v7, {OOB}")
        a(f"s_mul_i32 s13, s2, {nw}")
        a("s_add_u32 s13, s13, s12")
        a(f"s_cmp_ge_u32 s12, {nw}")
        a("s_cbranch_scc1 L_fold_end")
        a("s_cmp_ge_u32 s13, 324")
        a("s_cbranch_scc1 L_fold_end")
        a(f"s_mul_hi_u32 s14, s13, {(2**32+8)//9}")
        a("s_mul_i32 s15, s14, 9")
        a("s_sub_u32 s15, s13, s15")
        a("s_and_b32 s16, s14, 1")
        a("s_lshr_b32 s17, s14, 1")
        a("s_lshl_b32 s18, s17, 5")
        a("s_add_u32 s18, s18, s16")
        a("v_lshl_add_u32 v2, v3, 1, s18")
        a("s_lshl_b32 s18, s15, 6")
        a("v_lshl_add_u32 v3, v4, 4, s18")
        a("v_mul_u32_u24 v4, 1152, v2")
        a(f"v_add_u32 v{T}, v4, v3")
        a(f"v_sub_u32 v{T+1}, v3, v4")
        a(f"v_add_u32 v{T+2}, {1024*1152}, v{T+1}")
        a(f"v_add_u32 v{T+1}, {2048*1152}, v{T+1}")
        a(f"v_add_u32 v{T+3}, {1024*1152}, v{T}")
        a("v_cmp_lt_u32 vcc, 512, v2")
        a("s_movk_i32 s19, 512")
        a("v_cmp_le_u32 s[20:21], s19, v2")
        a("v_cmp_eq_u32 s[22:23], 0, v2")
        a("s_lshl_b32 s19, s12, 13")
        a("s_movk_i32 s24, 576")
        a("s_waitcnt lgkmcnt(0)")
        srd(a,8,4,2359296)
        a(f"v_cndmask_b32 v{T}, v{T}, v7, vcc")
        a(f"v_cndmask_b32 v{T+1}, v{T+1}, v7, vcc")
        a(f"v_cndmask_b32 v{T+2}, v{T+2}, v7, s[20:21]")
        a(f"v_cndmask_b32 v{T+3}, v{T+3}, v7, s[20:21]")
        a(f"v_cndmask_b32 v{T+3}, v{T+3}, v7, s[22:23]")
        for r in range(4):
            for hf in range(2):
                a(f"s_add_u32 m0, s19, {1024*(2*r+hf)}")
                a("s_nop 0")
                a(f"buffer_load_dwordx4 v{T+r}, s[8:11], {'s24' if hf else '0'} offen lds")
        srd(a,32,6,WS_END)
        a(f"v_and_b32 v{T+6}, 15, v1")
        perm5(a,T+4,T+6,T+5)
        a(f"v_lshrrev_b32 v{T+5}, 4, v1")
        a(f"v_lshl_add_u32 v6, v{T+4}, 2, v{T+5}")
        a("v_lshlrev_b32 v6, 4, v6")
        a("v_add_u32 v6, s19, v6")
        a(f"v_lshlrev_b32 v5, 9, v{T+5}")
        a(f"v_lshl_add_u32 v5, v{T+6}, 4, v5")
        a("s_mul_i32 s25, s16, 9")
        a("s_lshr_b32 s26, s17, 1")
        a("s_add_u32 s25, s25, s26")
        a("s_mul_i32 s25, s25, 18432")
        a("s_lshl_b32 s26, s15, 11")
        a("s_add_u32 s25, s25, s26")
        a("s_and_b32 s26, s17, 1")
        a("s_lshl_b32 s26, s26, 8")
        a("s_add_u32 s25, s25, s26")
        a("s_waitcnt vmcnt(0)")
        for k in range(8): a(f"ds_read_b128 {vr(L+4*k,4)}, v6 offset:{1024*k}")
        a("s_waitcnt lgkmcnt(0)")
        OUT=U+48
        for dw in range(4):
            res={}
            for part in range(2):
                x={}
                for r in range(4):
                    for hf in range(2):
                        d=U+16*part+2*r+hf; src=L+8*r+4*hf+dw
                        if part==0: a(f"v_lshlrev_b32 v{d}, 16, v{src}")
                        else: a(f"v_and_b32 v{d}, 0xffff0000, v{src}")
                        x[r,hf]=d
                eo={}
                for r in range(4):
                    e=U+16*part+8+2*r; o=e+1
                    a(f"v_add_f32 v{e}, v{x[r,0]}, v{x[r,1]}")
                    a(f"v_sub_f32 v{o}, v{x[r,0]}, v{x[r,1]}")
                    eo[r,0]=e; eo[r,1]=o
                for par in range(2):
                    b=U+16*part+4*par
                    a(f"v_add_f32 v{b}, v{eo[0,par]}, v{eo[1,par]}")
                    a(f"v_sub_f32 v{b+1}, v{eo[0,par]}, v{eo[1,par]}")
                    a(f"v_add_f32 v{b+2}, v{eo[2,par]}, v{eo[3,par]}")
                    a(f"v_sub_f32 v{b+3}, v{eo[2,par]}, v{eo[3,par]}")
                    f=U+32+8*part+4*par
                    a(f"v_add_f32 v{f}, v{b}, v{b+2}")
                    a(f"v_sub_f32 v{f+1}, v{b}, v{b+2}")
                    a(f"v_sub_f32 v{f+2}, v{b+1}, v{b+3}")
                    a(f"v_add_f32 v{f+3}, v{b+1}, v{b+3}")
                    for c in range(4): res[part,par,c]=f+c
            for c in range(4):
                for par in range(2):
                    a(f"v_cvt_pk_bf16_f32 v{OUT+4*(2*c+par)+dw}, v{res[0,par,c]}, v{res[1,par,c]}")
        for c in range(4):
            for par in range(2):
                a(f"s_add_u32 s20, s25, {WS_XF+(2*c+par)*18*18432}")
                a(f"buffer_store_dwordx4 {vr(OUT+4*(2*c+par),4)}, v5, s[32:35], s20 offen{WT}")
        a.label("L_fold_end")
        a("s_endpgm")
    return nwg,role

def mk_hid(nw):
    ntask=60; upw=3
    def role(a):
        a(f"s_load_dwordx4 s[36:39], s[0:1], 64")
        a("s_load_dwordx2 s[6:7], s[0:1], 96")
        common_ids(a)
        a(f"v_lshrrev_b32 v{T}, 2, v1")
        a(f"v_and_b32 v{T+1}, 3, v1")
        a(f"s_mul_i32 s13, s2, {nw}")
        a("s_add_u32 s13, s13, s12")
        a(f"s_cmp_ge_u32 s12, {nw}")
        a(f"s_cbranch_scc1 L_hid_end")
        a(f"s_cmp_ge_u32 s13, {ntask}")
        a(f"s_cbranch_scc1 L_hid_end")
        a(f"s_mul_hi_u32 s14, s13, {(2**32+2)//3}")
        a(f"s_mul_i32 s17, s14, 3")
        a("s_sub_u32 s17, s13, s17")
        a(f"s_mul_hi_u32 s15, s14, {(2**32+4)//5}")
        a("s_mul_i32 s16, s15, 5")
        a("s_sub_u32 s16, s14, s16")
        a("s_lshl_b32 s16, s16, 6")
        a("s_and_b32 s23, s15, 1")
        a("s_add_u32 s16, s16, s23")
        a(f"v_mul_u32_u24 v{T+2}, 2304, v{T}")
        a(f"v_lshl_add_u32 v{T+2}, v{T+1}, 4, v{T+2}")
        a(f"v_lshlrev_b32 v{T+3}, 9, v{T+1}")
        a(f"v_lshl_add_u32 v{T+3}, v{T}, 4, v{T+3}")
        a(f"s_mul_i32 s19, s16, 1152")
        a(f"s_mul_i32 s20, s17, 192")
        a("s_add_u32 s19, s19, s20")
        a(f"s_add_u32 s20, s19, {32*1152}")
        a(f"s_mul_i32 s21, s13, 6144")
        a(f"s_add_u32 s21, s21, {WS_HID}")
        a("s_waitcnt lgkmcnt(0)")
        a("s_cmp_ge_u32 s15, 2")
        a("s_cselect_b32 s4, s38, s36")
        a("s_cselect_b32 s5, s39, s37")
        srd(a,8,4,663552)
        srd(a,32,6,WS_END)
        for u in range(upw):
            for g in range(2):
                a(f"buffer_load_dwordx4 {vr(8+8*u+4*g,4)}, v{T+2}, s[8:11], s{19+g} offen offset:{64*u}")
        for u in range(upw):
            for g in range(2):
                a(f"s_waitcnt vmcnt({2*upw-1})")
                a(f"buffer_store_dwordx4 {vr(8+8*u+4*g,4)}, v{T+3}, s[32:35], s21 offen offset:{256*g}{WT}")
            a("s_add_u32 s21, s21, 2048")
        a.label(f"L_hid_end")
        a("s_endpgm")
    return (ntask+nw-1)//nw, role

def role_wot(a):
    a("s_load_dwordx2 s[6:7], s[0:1], 32")
    a("s_load_dwordx2 s[36:37], s[0:1], 96")
    common_ids(a)
    tr_lane_parts(a,T)
    a("s_cmp_ge_u32 s12, 4")
    a("s_cbranch_scc1 L_wot_end")
    a(f"v_lshrrev_b32 v{T+2}, 3, v1")
    a(f"v_mul_u32_u24 v{T+2}, 1152, v{T+2}")
    a(f"v_and_b32 v{T+4}, 7, v1")
    a(f"v_lshl_add_u32 v{T+2}, v{T+4}, 4, v{T+2}")
    a(f"s_mul_i32 s15, s12, 18432")
    a(f"s_mul_i32 s16, s12, {144*1152}")
    a("s_lshl_b32 s17, s2, 7")
    a("s_add_u32 s16, s16, s17")
    a("s_waitcnt lgkmcnt(0)")
    srd(a,28,6,663552)
    srd(a,32,36,WS_END)
    for i in range(18):
        a(f"s_add_u32 m0, s15, {1024*i}")
        a(f"s_add_u32 s21, s16, {9216*i}")
        a(f"buffer_load_dwordx4 v{T+2}, s[28:31], s21 offen lds")
    a(f"v_lshl_add_u32 v{T+4}, v3, 3, v5")
    a(f"v_lshlrev_b32 v{T+4}, 7, v{T+4}")
    a(f"v_lshl_add_u32 v{T+4}, v6, 3, v{T+4}")
    a(f"v_add_u32 v{T+4}, s15, v{T+4}")
    a(f"v_lshrrev_b32 v{T+5}, 1, v5")
    a(f"v_lshl_add_u32 v{T+5}, v3, 2, v{T+5}")
    a(f"v_mul_u32_u24 v{T+5}, 18, v{T+5}")
    a(f"v_and_b32 v{T+6}, 1, v5")
    a(f"v_add3_u32 v{T+5}, v{T+5}, v{T+6}, 16")
    a(f"v_lshlrev_b32 v{T+5}, 7, v{T+5}")
    a(f"v_lshl_add_u32 v{T+5}, v6, 3, v{T+5}")
    a(f"v_add_u32 v{T+5}, s15, v{T+5}")
    a("s_waitcnt vmcnt(0)")
    for t in range(2):
        for c in range(9):
            for u in range(2):
                d=8+4*(9*t+c)+2*u
                if c<8: a(f"ds_read_b64_tr_b16 {vr(d,2)}, v{T+4} offset:{c*18*128+u*512+t*64}")
                else: a(f"ds_read_b64_tr_b16 {vr(d,2)}, v{T+5} offset:{u*36*128+t*64}")
    a("s_lshl_b32 s20, s2, 1")
    a(f"s_mul_i32 s20, s20, 36864")
    a(f"s_add_u32 s20, s20, {WS_WOT}")
    a("s_lshl_b32 s21, s12, 13")
    a("s_add_u32 s21, s21, s20")
    a("s_lshl_b32 s22, s12, 10")
    a("s_add_u32 s22, s22, s20")
    a("s_add_u32 s22, s22, 32768")
    a("s_waitcnt lgkmcnt(0)")
    for t in range(2):
        for c in range(9):
            d=8+4*(9*t+c)
            if c<8:
                a(f"s_add_u32 s23, s21, {t*36864+(c>>2)*4096}")
                a(f"buffer_store_dwordx4 {vr(d,4)}, v4, s[32:35], s23 offen offset:{(c&3)*1024}")
            else:
                a(f"s_add_u32 s23, s22, {t*36864}")
                a(f"buffer_store_dwordx4 {vr(d,4)}, v4, s[32:35], s23 offen")
    a.label("L_wot_end")
    a("s_endpgm")

def s1_decode(a, st, sA, sB, sO, vO, vt, tmp):
    t0,t1,t2,t3,t4=tmp
    a(f"s_mul_hi_u32 s{t0}, s{st}, {(2**32+4)//5}")
    a(f"s_mul_i32 s{t1}, s{t0}, 5")
    a(f"s_sub_u32 s{t1}, s{st}, s{t1}")
    a(f"s_mul_i32 s{sA}, s{t0}, 18432")
    a(f"s_add_u32 s{sA}, s{sA}, {WS_XF}")
    a(f"s_mul_hi_u32 s{t2}, s{t0}, {(2**32+8)//9}")
    a(f"s_mul_i32 s{t3}, s{t2}, 9")
    a(f"s_sub_u32 s{t3}, s{t0}, s{t3}")
    a(f"s_bfe_u32 s{t4}, s{t2}, 0x10001")
    a(f"s_lshr_b32 s{sB}, s{t2}, 3")
    a(f"s_lshl_b32 s{sB}, s{sB}, 1")
    a(f"s_add_u32 s{sB}, s{sB}, s{t4}")
    a(f"s_mul_i32 s{sB}, s{sB}, 5")
    a(f"s_add_u32 s{sB}, s{sB}, s{t1}")
    a(f"s_mul_i32 s{sB}, s{sB}, 18432")
    a(f"s_add_u32 s{sB}, s{sB}, {WS_HID}")
    a(f"s_lshr_b32 s{sO}, s{t2}, 2")
    a(f"s_lshl_b32 s{sO}, s{sO}, 1")
    a(f"s_and_b32 s{t0}, s{t2}, 1")
    a(f"s_add_u32 s{sO}, s{sO}, s{t0}")
    a(f"s_mul_i32 s{sO}, s{sO}, 5")
    a(f"s_add_u32 s{sO}, s{sO}, s{t1}")
    a(f"s_mul_i32 s{sO}, s{sO}, 36864")
    a(f"s_lshl_b32 s{t3}, s{t3}, 11")
    a(f"s_add_u32 s{sO}, s{sO}, s{t3}")
    a(f"s_add_u32 s{sO}, s{sO}, {WS_A1T}")
    v0,v1=vt
    a(f"s_lshl_b32 s{t4}, s{t4}, 8")
    a(f"s_add_u32 s{sO}, s{sO}, s{t4}")
    a(f"v_and_b32 v{vO}, 15, v2")
    a(f"v_lshlrev_b32 v{vO}, 4, v{vO}")
    a(f"v_lshl_add_u32 v{vO}, v3, 9, v{vO}")
    a(f"v_lshrrev_b32 v{v0}, 4, v2")
    a(f"v_mul_u32_u24 v{v0}, 18432, v{v0}")
    a(f"v_add_u32 v{vO}, v{vO}, v{v0}")

def role_s1(a):
    A=8; B=80; D=152; T=168
    a("s_load_dwordx2 s[6:7], s[0:1], 96")
    common_ids(a)
    a("s_nop 2")
    a("s_lshl_b32 s13, s2, 2")
    a("s_add_u32 s13, s13, s12")
    s1_decode(a,13,18,19,22,T,(T+1,T+2),(14,15,16,17,20))
    a("s_waitcnt lgkmcnt(0)")
    srd(a,32,6,WS_END)
    for ks in range(18):
        a(f"buffer_load_dwordx4 {vr(A+4*ks,4)}, v4, s[32:35], s18 offen offset:{1024*(ks&3)}")
        a(f"buffer_load_dwordx4 {vr(B+4*ks,4)}, v4, s[32:35], s19 offen offset:{1024*(ks&3)}")
        if (ks&3)==3:
            a("s_add_u32 s18, s18, 4096"); a("s_add_u32 s19, s19, 4096")
    for ks in range(18):
        a(f"s_waitcnt vmcnt({2*(17-ks)})")
        a(f"v_mfma_f32_32x32x16_bf16 {vr(D,16)}, {vr(A+4*ks,4)}, {vr(B+4*ks,4)}, {'0' if ks==0 else vr(D,16)}")
    a("s_nop 11")
    for k in range(8): a(f"v_cvt_pk_bf16_f32 v{A+k}, v{D+2*k}, v{D+2*k+1}")
    a(f"buffer_store_dwordx4 {vr(A,4)}, v{T}, s[32:35], s22 offen")
    a(f"buffer_store_dwordx4 {vr(A+4,4)}, v{T}, s[32:35], s22 offen offset:1024")
    a("s_endpgm")

def seq_decode(a, sTile, sTrig, sKs, sL, sO, tmp):
    t0,t1=tmp
    a(f"s_cmp_ge_u32 s{sTile}, 10")
    a(f"s_cselect_b32 s{t0}, 1, 0")
    a(f"s_mul_i32 s{t1}, s{t0}, 10")
    a(f"s_sub_u32 s{t1}, s{sTile}, s{t1}")
    a(f"s_lshl_b32 s{t1}, s{t1}, 6")
    a(f"s_add_u32 s{t1}, s{t1}, s{t0}")
    a(f"s_lshl_b32 s{sL}, s{t1}, 12")
    a(f"s_lshl_b32 s{t0}, s{sKs}, 6")
    a(f"s_add_u32 s{sL}, s{sL}, s{t0}")
    a(f"s_mul_i32 s{sO}, s{sTrig}, 18")
    a(f"s_add_u32 s{sO}, s{sO}, s{sTile}")
    a(f"s_mul_i32 s{sO}, s{sO}, 34816")
    a(f"s_lshl_b32 s{t0}, s{sKs}, 10")
    a(f"s_add_u32 s{sO}, s{sO}, s{t0}")
    a(f"s_add_u32 s{sO}, s{sO}, {WS_SEQ}")

def role_seq(a):
    a("s_load_dwordx4 s[36:39], s[0:1], 48")
    a("s_load_dwordx2 s[6:7], s[0:1], 96")
    common_ids(a)
    a("s_nop 2")
    a("s_lshl_b32 s13, s2, 2")
    a("s_add_u32 s13, s13, s12")
    a(f"s_mul_hi_u32 s14, s13, {(2**32+16)//17}")
    a("s_mul_i32 s15, s14, 17")
    a("s_sub_u32 s15, s13, s15")
    a("s_cmp_ge_u32 s14, 18")
    a("s_cselect_b32 s16, 1, 0")
    a("s_mul_i32 s17, s16, 18")
    a("s_sub_u32 s17, s14, s17")
    seq_decode(a,17,16,15,18,19,(20,21))
    a("v_lshlrev_b32 v5, 13, v2")
    a("v_lshl_add_u32 v5, v3, 5, v5")
    a("s_mov_b32 s22, 0x05040100")
    a("s_mov_b32 s23, 0x07060302")
    a("s_add_u32 s20, s19, 17408")
    a("s_waitcnt lgkmcnt(0)")
    a("s_cmp_eq_u32 s16, 1")
    a("s_cselect_b32 s4, s38, s36")
    a("s_cselect_b32 s5, s39, s37")
    srd(a,8,4,8388608)
    srd(a,32,6,WS_END)
    a("buffer_load_dwordx4 v[8:11], v5, s[8:11], s18 offen")
    a("buffer_load_dwordx4 v[12:15], v5, s[8:11], s18 offen offset:16")
    a("s_waitcnt vmcnt(0)")
    for k in range(4):
        a(f"v_perm_b32 v{16+k}, v{9+2*k}, v{8+2*k}, s22")
        a(f"v_perm_b32 v{20+k}, v{9+2*k}, v{8+2*k}, s23")
    a("buffer_store_dwordx4 v[16:19], v4, s[32:35], s19 offen")
    a("buffer_store_dwordx4 v[20:23], v4, s[32:35], s20 offen")
    a("s_endpgm")

def role_s2(a):
    A=8; B=76; D=144; T=160; RB=69632
    a("s_load_dwordx2 s[6:7], s[0:1], 96")
    a("s_load_dwordx2 s[40:41], s[0:1], 80")
    common_ids(a)
    a("s_and_b32 s13, s2, 7")
    a("s_lshr_b32 s14, s2, 3")
    a("s_sub_u32 s15, s2, 80")
    a("s_cmp_ge_u32 s2, 80")
    a("s_cselect_b32 s13, 8, s13")
    a("s_cselect_b32 s14, s15, s14")
    a("s_cmp_ge_u32 s13, 5")
    a("s_cselect_b32 s15, 1, 0")
    a("s_mul_i32 s16, s15, 5")
    a("s_sub_u32 s16, s13, s16")
    a("s_lshl_b32 s16, s16, 7")
    a("s_add_u32 s16, s16, s15")
    a("s_bfe_u32 s17, s12, 0x10001")
    a("s_and_b32 s18, s12, 1")
    a("s_lshr_b32 s28, s12, 2")
    a("s_lshl_b32 s19, s17, 1")
    a("s_add_u32 s19, s19, s15")
    a("s_lshl_b32 s19, s19, 1")
    a("s_add_u32 s19, s19, s18")
    a("s_mul_i32 s19, s19, 10")
    a("s_add_u32 s19, s19, s14")
    a("s_mul_i32 s19, s19, 18432")
    a("s_lshl_b32 s20, s28, 13")
    a("s_add_u32 s19, s19, s20")
    a(f"s_add_u32 s19, s19, {WS_A1T}")
    a("s_and_b32 s21, s12, 3")
    a("s_mul_i32 s21, s21, 17408")
    a("s_add_u32 s22, s21, s20")
    a("s_mul_i32 s23, s17, 18")
    a("s_lshl_b32 s24, s13, 1")
    a("s_add_u32 s23, s23, s24")
    a("s_add_u32 s23, s23, s28")
    a("s_lshl_b32 s23, s23, 1")
    a("s_add_u32 s23, s23, s18")
    a("s_mul_i32 s23, s23, 17408")
    a(f"s_add_u32 s23, s23, {WS_SEQ}")
    perm5(a,5,2,6)
    a("v_and_b32 v6, 1, v5")
    a("v_lshrrev_b32 v5, 1, v5")
    a("v_lshlrev_b32 v5, 4, v5")
    a("v_lshl_add_u32 v5, v6, 8, v5")
    a("v_lshl_add_u32 v5, v3, 9, v5")
    a("v_add_u32 v5, s21, v5")
    a("s_waitcnt lgkmcnt(0)")
    srd(a,32,6,WS_END)
    for i in range(9):
        a(f"s_add_u32 m0, s22, {1024*i}")
        a(f"s_add_u32 s24, s19, {1024*i}")
        a(f"buffer_load_dwordx4 v4, s[32:35], s24 offen lds")
    for ks in range(17):
        a(f"buffer_load_dwordx4 {vr(B+4*ks,4)}, v4, s[32:35], s23 offen offset:{1024*(ks&3)}")
        if (ks&3)==3: a("s_add_u32 s23, s23, 4096")
    srd(a,44,40,4718592)
    a("s_waitcnt vmcnt(17)")
    a("s_barrier")
    for ks in range(17): a(f"ds_read_b128 {vr(A+4*ks,4)}, v5 offset:{1024*ks}")
    a("s_lshl_b32 s23, s28, 6")
    a("s_add_u32 s23, s23, s16")
    a(f"v_lshl_add_u32 v{T+1}, v2, 1, s23")
    a(f"v_sub_u32 v{T+2}, 1024, v{T+1}")
    a("s_cmp_eq_u32 s17, 1")
    a("s_cselect_b64 vcc, -1, 0")
    a("s_cselect_b32 s29, -1.0, 1.0")
    a("s_sub_u32 s25, 512, s17")
    a(f"v_cndmask_b32 v{T+11}, v{T+1}, v{T+2}, vcc")
    a("s_lshl_b32 s24, s14, 5")
    a("s_lshl_b32 s26, s18, 4")
    a("s_add_u32 s24, s24, s26")
    a(f"v_lshl_add_u32 v{T+2}, v3, 3, s24")
    a(f"v_mul_u32_u24 v{T+3}, 2304, v{T+11}")
    a(f"v_sub_u32 v{T+4}, {2048*2304}, v{T+3}")
    a(f"v_mov_b32 v{T+5}, {OOB}")
    a(f"v_cmp_lt_u32 vcc, s25, v{T+1}")
    a(f"v_add_u32 v{T+6}, -1, v{T+11}")
    a("s_movk_i32 s25, 1023")
    a(f"v_cmp_le_u32 s[26:27], s25, v{T+6}")
    a(f"v_lshlrev_b32 v{T+6}, 1, v{T+2}")
    a(f"v_cndmask_b32 v{T+3}, v{T+3}, v{T+5}, vcc")
    a(f"v_cndmask_b32 v{T+4}, v{T+4}, v{T+5}, vcc")
    a(f"v_cndmask_b32 v{T+4}, v{T+4}, v{T+5}, s[26:27]")
    a(f"v_add_u32 v{T+7}, v{T+3}, v{T+6}")
    a(f"v_add_u32 v{T+8}, v{T+4}, v{T+6}")
    a(f"v_sub_u32 v{T+6}, {1152+(576-7)*2}, v{T+6}")
    a(f"v_add_u32 v{T+9}, v{T+3}, v{T+6}")
    a(f"v_add_u32 v{T+10}, v{T+4}, v{T+6}")
    a("s_lshl_b32 s23, s12, 12")
    a(f"s_add_u32 s23, s23, {RB}")
    a("v_add_u32 v7, s23, v4")
    a("s_lshl_b32 s23, s28, 14")
    a("s_lshl_b32 s26, s18, 11")
    a("s_add_u32 s23, s23, s26")
    a(f"s_add_u32 s23, s23, {RB}")
    a(f"v_add_u32 v{T}, s23, v4")
    for ks in range(17):
        a(f"s_waitcnt vmcnt({16-ks}) lgkmcnt({min(15,16-ks)})")
        a(f"v_mfma_f32_32x32x16_bf16 {vr(D,16)}, {vr(A+4*ks,4)}, {vr(B+4*ks,4)}, {'0' if ks==0 else vr(D,16)}")
    a("s_nop 11")
    for i in range(4): a(f"ds_write_b128 v7, {vr(D+4*i,4)} offset:{1024*i}")
    a("s_waitcnt lgkmcnt(0)")
    a("s_barrier")
    L=8
    for ty in range(4):
        for qd in range(2):
            a(f"ds_read_b128 {vr(L+8*ty+4*qd,4)}, v{T} offset:{4096*ty+1024*qd}")
    a("s_waitcnt lgkmcnt(4)")
    for r in range(8): a(f"v_fma_f32 v{L+r}, v{L+8+r}, s29, v{L+r}")
    a("s_waitcnt lgkmcnt(0)")
    for r in range(8): a(f"v_fma_f32 v{L+16+r}, v{L+16+r}, s29, v{L+24+r}")
    for r in range(8): a(f"v_sub_f32 v{L+32+r}, v{L+r}, v{L+16+r}")
    for r in range(8): a(f"v_add_f32 v{L+40+r}, v{L+r}, v{L+16+r}")
    M=L+32; Pl=L+40; O=L+48
    for k in range(4): a(f"v_cvt_pk_bf16_f32 v{O+k}, v{M+2*k}, v{M+2*k+1}")
    for k in range(4): a(f"v_cvt_pk_bf16_f32 v{O+4+k}, v{Pl+2*k}, v{Pl+2*k+1}")
    for k in range(4): a(f"v_cvt_pk_bf16_f32 v{O+8+k}, v{Pl+7-2*k}, v{Pl+6-2*k}")
    for k in range(4): a(f"v_cvt_pk_bf16_f32 v{O+12+k}, v{M+7-2*k}, v{M+6-2*k}")
    a("s_cmp_eq_u32 s14, 9")
    a("s_cbranch_scc1 L_s2_e288")
    a(f"buffer_store_dwordx4 {vr(O,4)}, v{T+7}, s[44:47], 0 offen offset:1152")
    a(f"buffer_store_dwordx4 {vr(O+4,4)}, v{T+8}, s[44:47], 0 offen offset:1152")
    a("s_cmp_eq_u32 s24, 0")
    a("s_cbranch_scc1 L_s2_e0")
    a(f"buffer_store_dwordx4 {vr(O+8,4)}, v{T+9}, s[44:47], 0 offen")
    a(f"buffer_store_dwordx4 {vr(O+12,4)}, v{T+10}, s[44:47], 0 offen")
    a("s_endpgm")
    a.label("L_s2_e0")
    a(f"buffer_store_dwordx3 {vr(O+8,3)}, v{T+9}, s[44:47], 0 offen")
    a(f"buffer_store_dwordx3 {vr(O+12,3)}, v{T+10}, s[44:47], 0 offen")
    a(f"buffer_store_short v{O+11}, v{T+9}, s[44:47], 0 offen offset:12")
    a(f"buffer_store_short v{O+15}, v{T+10}, s[44:47], 0 offen offset:12")
    a("s_mov_b32 exec_lo, 0")
    a(f"buffer_store_short_d16_hi v{O+11}, v{T+9}, s[44:47], 0 offen offset:14")
    a(f"buffer_store_short_d16_hi v{O+15}, v{T+10}, s[44:47], 0 offen offset:14")
    a("s_endpgm")
    a.label("L_s2_e288")
    a("s_cmp_lg_u32 s18, 0")
    a("s_cbranch_scc1 L_s2_end")
    a("s_mov_b32 exec_hi, 0")
    a(f"buffer_store_short v{O}, v{T+7}, s[44:47], 0 offen offset:1152")
    a(f"buffer_store_short v{O+4}, v{T+8}, s[44:47], 0 offen offset:1152")
    a.label("L_s2_end")
    a("s_endpgm")
```

```python
from asmlib import *
FR=8
ACC=72
T=88
SG_NV=112
PROBAR=True

def sg_core(a, pfx, P, Tn, RP, xkind, wkind, NP=9, swap_t=None, NW=None, custom=False, swap_cond=None, lastpair=False):
    NB=P+Tn; PB=NB*4096
    if NW is None: NW=P*Tn
    if custom: pass
    elif P==2:
        a("s_and_b32 s13, s12, 1"); a("s_lshr_b32 s14, s12, 1")
    elif P==4:
        a("s_and_b32 s13, s12, 3"); a("s_lshr_b32 s14, s12, 2")
    elif P==1:
        a("s_mov_b32 s13, 0"); a("s_mov_b32 s14, s12")
    a("s_lshl_b32 s19, s13, 12")
    a(f"s_add_u32 s20, s14, {P}")
    a("s_lshl_b32 s20, s20, 12")
    XA=[T+1,T+2]; WA=T+3
    if xkind=="row":
        a(f"v_bfe_u32 v{T+8}, v2, 2, 2")
        a(f"v_xor_b32 v{T+8}, v{T+8}, v3")
        a(f"v_lshlrev_b32 v{T+8}, 4, v{T+8}")
        a(f"v_lshl_add_u32 v{T+8}, v2, 6, v{T+8}")
        a(f"v_add_u32 v{XA[0]}, s19, v{T+8}")
        a(f"v_xor_b32 v{XA[1]}, 32, v{XA[0]}")
    else:
        a(f"v_add_u32 v{XA[0]}, s19, v4")
        a(f"v_add_u32 v{XA[1]}, 1024, v{XA[0]}")
    if wkind=="row":
        a(f"v_lshl_add_u32 v{WA}, v3, 3, v5")
        a(f"v_lshlrev_b32 v{WA}, 6, v{WA}")
        a(f"v_lshl_add_u32 v{WA}, v6, 3, v{WA}")
        a(f"v_add_u32 v{WA}, s20, v{WA}")
    else:
        a(f"v_add_u32 v{WA}, s20, v4")
    HI=((RP+1)//2)*PB if (RP-1)*PB+4096>65535 else None
    if HI:
        for r in (XA[0],XA[1],WA): a(f"v_add_u32 v{r+4}, {HI}, v{r}")
    def ad(reg,off):
        if HI and off>=HI: return f"v{reg+4} offset:{off-HI}"
        return f"v{reg} offset:{off}"
    a("s_lshl_b32 s15, s12, 12")
    a("s_lshl_b32 s21, s18, 1")
    a("s_mul_i32 s22, s27, s21")
    a("s_add_u32 s22, s22, s16")
    a(f"s_mul_i32 s23, s21, {NP-1 if lastpair else NP}")
    a("s_add_u32 s23, s23, s16")
    cnt=[0]
    def issue(i):
        lab=f"L_{pfx}_ns{i}"
        if NB<NW:
            a(f"s_cmp_ge_u32 s12, {NB}")
            a(f"s_cbranch_scc1 {lab}")
        slot=(i%RP)*PB
        if lastpair and i==NP-1:
            a("s_mov_b32 s22, s38"); a("s_mov_b32 s17, s39"); a("s_lshl_b32 s18, s39, 1"); a(f"v_mov_b32 v{T}, v{T+14}")
        for u in range(2):
            for g in range(2):
                a(f"s_add_u32 m0, s15, {slot+2048*u+1024*g}")
                if u==0 and g==0: a("s_nop 0"); so="s22"
                elif u==0: a("s_add_u32 s24, s22, s17"); so="s24"
                elif g==0: a("s_add_u32 s25, s22, s18"); so="s25"
                else: a("s_add_u32 s24, s25, s17"); so="s24"
                a(f"buffer_load_dwordx4 v{T}, s[8:11], {so} offen lds")
        a("s_add_u32 s22, s22, s21")
        a("s_cmp_ge_u32 s22, s23")
        a("s_cselect_b32 s22, s16, s22")
        if NB<NW: a.label(lab)
    def reads(i):
        slot=(i%RP)*PB; b=FR+32*(i&1); l=[]
        for ks in range(4):
            u=ks>>1; k2=ks&1
            if wkind=="row":
                for uu in range(2):
                    l.append(f"ds_read_b64_tr_b16 {vr(b+8*ks+2*uu,2)}, {ad(WA,slot+2048*u+1024*k2+256*uu)}")
            else:
                l.append(f"ds_read_b128 {vr(b+8*ks,4)}, {ad(WA,slot+2048*u+1024*k2)}")
            l.append(f"ds_read_b128 {vr(b+8*ks+4,4)}, {ad(XA[k2],slot+2048*u)}")
        return l
    def mf(i,sw):
        b=FR+32*(i&1); l=[]
        for ks in range(4):
            A=vr(b+8*ks,4); B=vr(b+8*ks+4,4)
            if sw: A,B=B,A
            l.append(f"v_mfma_f32_32x32x16_bf16 {vr(ACC,16)}, {A}, {B}, {'0' if (i==0 and ks==0) else vr(ACC,16)}")
        return l
    assert RP*PB<=163840
    def body(sw,tag):
        for i in range(NP+1):
            if i<NP:
                infl=min(NP,i+RP-1)-1-i
                a(f"s_waitcnt vmcnt({4*infl})")
                a("s_barrier")
                r=reads(i)
            else: r=[]
            m=mf(i-1,sw) if i>0 else []
            n=max(len(m),1); per=(len(r)+n-1)//n
            for k in range(n):
                for x in r[k*per:(k+1)*per]: a(x)
                if k<len(m): a(m[k])
            if i<NP and i+RP-1<NP and i>=0:
                issue_tagged(i+RP-1,tag)
            if i<NP: a("s_waitcnt lgkmcnt(0)")
    def issue_tagged(i,tag):
        nonlocal pfx
        old=pfx; pfx=old+tag; issue(i); pfx=old
    for i in range(RP-1):
        issue(i)
        if i<RP-2 and PROBAR: a('s_barrier ; pro')
    if swap_t is not None or swap_cond:
        a(swap_cond if swap_cond else f"s_cmp_eq_u32 s14, {swap_t}")
        a(f"s_cbranch_scc1 L_{pfx}_sw")
        body(False,"a")
        a(f"s_branch L_{pfx}_done")
        a.label(f"L_{pfx}_sw")
        body(True,"b")
        a.label(f"L_{pfx}_done")
    else:
        body(False,"a")

from gen_gemm import common_ids, tr_lane_parts, f32bits, C_SCALE

def tile_ids(a,P,Tn):
    per=8//P
    sh={8:3,4:2,2:1}[per]
    a("s_and_b32 s28, s2, 7")
    a(f"s_lshl_b32 s28, s28, {sh}")
    a(f"s_bfe_u32 s29, s2, {(sh<<16)|3}")
    a("s_add_u32 s28, s28, s29")
    a("s_mov_b32 s27, s29")
    a(f"s_lshr_b32 s29, s2, {3+sh}")

def row_voffsets(a,wstride):
    a(f"v_lshrrev_b32 v{T+9}, 2, v1")
    a(f"v_and_b32 v{T+11}, 3, v1")
    a(f"v_mul_u32_u24 v{T+10}, {wstride}, v{T+9}")
    a(f"v_lshl_add_u32 v{T+10}, v{T+11}, 4, v{T+10}")
    a(f"v_mul_u32_u24 v{T+9}, 1152, v{T+9}")
    a(f"v_lshrrev_b32 v{T+12}, 4, v1")
    a(f"v_xor_b32 v{T+12}, v{T+12}, v{T+11}")
    a(f"v_lshl_add_u32 v{T+9}, v{T+12}, 4, v{T+9}")

def store_tile(a,P,Tn,ostride,out_off,R):
    a(f"s_mul_i32 s21, s28, {P}")
    a("s_add_u32 s21, s21, s13")
    a(f"s_mul_i32 s21, s21, {32*ostride}")
    a(f"s_mul_i32 s22, s29, {Tn}")
    a("s_add_u32 s22, s22, s14")
    a("s_lshl_b32 s22, s22, 6")
    a("s_add_u32 s21, s21, s22")
    if out_off: a(f"s_add_u32 s21, s21, {out_off}")
    a(f"v_mul_u32_u24 v{T}, {ostride}, v2")
    a(f"v_lshl_add_u32 v{T}, v3, 4, v{T}")

def mk_qproj(P,Tn,RP):
    def role(a):
        a("s_load_dwordx4 s[4:7], s[0:1], 0")
        a("s_load_dwordx2 s[36:37], s[0:1], 96")
        common_ids(a)
        tr_lane_parts(a,T)
        tile_ids(a,P,Tn)
        a("s_lshl_b32 s27, s27, 1")
        a("s_add_u32 s27, s27, s29")
        a("s_cmp_ge_u32 s27, 9"); a("s_cselect_b32 s30, 9, 0"); a("s_sub_u32 s27, s27, s30")
        row_voffsets(a,1152)
        a(f"s_mul_i32 s30, s28, {P}")
        a("s_add_u32 s30, s30, s12")
        a(f"s_mul_i32 s30, s30, {32*1152}")
        a(f"s_mul_i32 s31, s29, {Tn}")
        a("s_add_u32 s31, s31, s12")
        a(f"s_sub_u32 s31, s31, {P}")
        a("s_lshl_b32 s31, s31, 6")
        a(f"v_cmp_gt_u32 vcc, {64*P}, v0")
        a("s_mov_b32 s17, 18432")
        a("s_mov_b32 s10, 663552")
        a("s_waitcnt lgkmcnt(0)")
        a(f"s_cmp_lt_u32 s12, {P}")
        a("s_cselect_b32 s16, s30, s31")
        a("s_cselect_b32 s18, 64, 36864")
        a("s_cselect_b32 s8, s4, s6")
        a("s_cselect_b32 s9, s5, s7")
        a("s_cselect_b32 s10, 2359296, s10")
        a("s_mov_b32 s11, 0x00020000")
        a(f"v_cndmask_b32 v{T}, v{T+10}, v{T+9}, vcc")
        srd(a,32,36,WS_END)
        sg_core(a,"qp",P,Tn,RP,"row","row")
        store_tile(a,P,Tn,1152,WS_Q,FR)
        a(f"s_mov_b32 s20, 0x{f32bits(C_SCALE):08x}")
        a("s_nop 1")
        for r in range(16): a(f"v_mul_f32 v{ACC+r}, s20, v{ACC+r}")
        for k in range(8): a(f"v_cvt_pk_bf16_f32 v{FR+k}, v{ACC+2*k}, v{ACC+2*k+1}")
        a(f"buffer_store_dwordx4 {vr(FR,4)}, v{T}, s[32:35], s21 offen")
        a(f"buffer_store_dwordx4 {vr(FR+4,4)}, v{T}, s[32:35], s21 offen offset:32")
        a("s_endpgm")
    return role

def mk_oproj(P,Tn,RP):
    def role(a):
        a("s_load_dwordx2 s[4:5], s[0:1], 96")
        a("s_load_dwordx2 s[6:7], s[0:1], 32")
        a("s_load_dwordx2 s[36:37], s[0:1], 80")
        common_ids(a)
        tile_ids(a,P,Tn)
        a("s_lshl_b32 s27, s27, 2")
        a("s_add_u32 s27, s27, s29")
        a("s_and_b32 s27, s27, 7")
        a(f"s_mul_i32 s30, s28, {P}")
        a("s_add_u32 s30, s30, s12")
        a(f"s_mul_i32 s30, s30, 36864")
        a(f"s_add_u32 s30, s30, {WS_O}")
        a(f"s_mul_i32 s31, s29, {Tn}")
        a("s_add_u32 s31, s31, s12")
        a(f"s_sub_u32 s31, s31, {P}")
        a("s_lshl_b32 s31, s31, 6")
        a(f"v_lshrrev_b32 v{T+9}, 2, v1")
        a(f"v_and_b32 v{T+11}, 3, v1")
        a(f"v_lshlrev_b32 v{T+11}, 4, v{T+11}")
        a(f"v_mul_u32_u24 v{T+10}, 1152, v{T+9}")
        a(f"v_add_u32 v{T+10}, v{T+10}, v{T+11}")
        a(f"v_lshrrev_b32 v{T+12}, 1, v{T+9}")
        a(f"v_mul_u32_u24 v{T+12}, 18, v{T+12}")
        a(f"v_and_b32 v{T+9}, 1, v{T+9}")
        a(f"v_add3_u32 v{T+12}, v{T+12}, v{T+9}, 16")
        a(f"v_mul_u32_u24 v{T+12}, 1152, v{T+12}")
        a(f"v_add_u32 v{T+12}, v{T+12}, v{T+11}")
        a(f"v_cmp_gt_u32 vcc, {64*P}, v0")
        a("s_add_u32 s38, s30, 32768")
        a("s_mov_b32 s10, 663552")
        a(f"s_mov_b32 s33, {18*1152}")
        a(f"s_mov_b32 s34, {144*1152}")
        a("s_waitcnt lgkmcnt(0)")
        a(f"s_cmp_lt_u32 s12, {P}")
        a("s_cselect_b32 s16, s30, s31")
        a("s_cselect_b32 s17, 1024, s33")
        a("s_cselect_b32 s38, s38, s31")
        a("s_cselect_b32 s39, 1024, s34")
        a("s_cselect_b32 s8, s4, s6")
        a("s_cselect_b32 s9, s5, s7")
        a(f"s_cselect_b32 s10, {WS_END}, s10")
        a("s_mov_b32 s11, 0x00020000")
        a("s_lshl_b32 s18, s17, 1")
        a(f"v_cndmask_b32 v{T}, v{T+10}, v4, vcc")
        a(f"v_cndmask_b32 v{T+14}, v{T+12}, v4, vcc")
        tr_lane_parts(a,T+9)
        srd(a,32,36,4718592)
        sg_core(a,"op",P,Tn,RP,"frag","row",lastpair=True)
        store_tile(a,P,Tn,2304,0,FR)
        a("s_nop 3")
        for k in range(8): a(f"v_cvt_pk_bf16_f32 v{FR+k}, v{ACC+2*k}, v{ACC+2*k+1}")
        a(f"buffer_store_dwordx4 {vr(FR,4)}, v{T}, s[32:35], s21 offen")
        a(f"buffer_store_dwordx4 {vr(FR+4,4)}, v{T}, s[32:35], s21 offen offset:32")
        a("s_endpgm")
    return role

def role_qkv(a):
    P=2; Tn=3; RP=3
    a("s_load_dwordx8 s[40:47], s[0:1], 0")
    a("s_load_dwordx2 s[36:37], s[0:1], 96")
    common_ids(a)
    tile_ids(a,2,2)
    a("s_lshl_b32 s27, s27, 1")
    a("s_add_u32 s27, s27, s29")
    a("s_cmp_ge_u32 s27, 9"); a("s_cselect_b32 s30, 9, 0"); a("s_sub_u32 s27, s27, s30")
    a("s_lshr_b32 s26, s29, 1")
    a("s_lshl_b32 s30, s28, 1")
    a("s_add_u32 s30, s30, s12")
    a(f"s_mul_i32 s30, s30, {32*1152}")
    a("s_lshl_b32 s31, s29, 1")
    a("s_add_u32 s31, s31, s12")
    a("s_sub_u32 s31, s31, 2")
    a("s_add_u32 s33, s26, 16")
    a("s_cmp_eq_u32 s12, 4")
    a("s_cselect_b32 s31, s33, s31")
    a("s_cselect_b32 s34, s26, 0")
    a("s_lshl_b32 s31, s31, 6")
    row_voffsets(a,1152)
    a(f"v_lshrrev_b32 v{T+12}, 2, v1")
    a(f"v_mul_u32_u24 v{T+12}, 36, v{T+12}")
    a(f"v_lshl_add_u32 v{T+12}, v{T+11}, 4, v{T+12}")
    a(f"v_mov_b32 v{T+13}, {OOB}")
    a(f"v_cmp_eq_u32 vcc, 3, v{T+11}")
    a("s_mov_b32 s17, 18432")
    a("s_mov_b32 s10, 663552")
    a(f"v_cndmask_b32 v{T+12}, v{T+12}, v{T+13}, vcc")
    a(f"v_cmp_gt_u32 vcc, 128, v0")
    a("s_waitcnt lgkmcnt(0)")
    a("s_cmp_lt_u32 s12, 2")
    a("s_cselect_b32 s16, s30, s31")
    a("s_cselect_b32 s18, 64, 36864")
    a("s_cselect_b32 s8, s40, s42")
    a("s_cselect_b32 s9, s41, s43")
    a("s_cselect_b32 s10, 2359296, s10")
    a("s_mov_b32 s11, 0x00020000")
    a(f"v_cndmask_b32 v{T}, v{T+10}, v{T+9}, vcc")
    a("s_cmp_lt_u32 s34, 2")
    a("s_cbranch_scc1 L_qkv_nokv")
    a("s_cmp_eq_u32 s34, 2")
    a("s_cselect_b32 s8, s44, s46")
    a("s_cselect_b32 s9, s45, s47")
    a("s_movk_i32 s10, 20736")
    a("s_mov_b32 s16, 0")
    a("s_movk_i32 s17, 576")
    a("s_movk_i32 s18, 1152")
    a(f"v_mov_b32 v{T}, v{T+12}")
    a.label("L_qkv_nokv")
    tr_lane_parts(a,T+9)
    srd(a,32+4+0,36,WS_END) if False else None
    a("s_and_b32 s13, s12, 1")
    a("s_lshr_b32 s14, s12, 1")
    a("s_and_b32 s30, s29, 1")
    a("s_cmp_eq_u32 s12, 4")
    a("s_cselect_b32 s13, s30, s13")
    sg_core(a,"qkv",P,Tn,RP,"row","row",NW=5,custom=True,swap_cond="s_cmp_eq_u32 s34, 3")
    srd(a,40,36,WS_END)
    a("s_lshl_b32 s21, s28, 1")
    a("s_add_u32 s21, s21, s13")
    a("s_cmp_ge_u32 s34, 2")
    a("s_cbranch_scc1 L_qkv_kv")
    a("s_lshl_b32 s22, s29, 1")
    a("s_add_u32 s22, s22, s14")
    a("s_cmp_eq_u32 s12, 4")
    a("s_cselect_b32 s22, s33, s22")
    a("s_lshl_b32 s22, s22, 6")
    a(f"s_mul_i32 s21, s21, {32*1152}")
    a("s_add_u32 s21, s21, s22")
    a(f"v_mul_u32_u24 v{T}, 1152, v2")
    a(f"v_lshl_add_u32 v{T}, v3, 4, v{T}")
    a(f"s_mov_b32 s20, 0x{f32bits(C_SCALE):08x}")
    for r in range(16): a(f"v_mul_f32 v{ACC+r}, s20, v{ACC+r}")
    for k in range(8): a(f"v_cvt_pk_bf16_f32 v{FR+k}, v{ACC+2*k}, v{ACC+2*k+1}")
    a(f"buffer_store_dwordx4 {vr(FR,4)}, v{T}, s[40:43], s21 offen")
    a(f"buffer_store_dwordx4 {vr(FR+4,4)}, v{T}, s[40:43], s21 offen offset:32")
    a("s_endpgm")
    a.label("L_qkv_kv")
    a("s_cmp_eq_u32 s34, 3")
    a("s_cbranch_scc1 L_qkv_v")
    a("s_nop 3")
    for k in range(5): a(f"v_cvt_pk_bf16_f32 v{FR+k}, v{ACC+2*k}, v{ACC+2*k+1}")
    a("s_lshl_b32 s23, s21, 10")
    a(f"s_add_u32 s23, s23, {WS_KF1}")
    a(f"buffer_store_dwordx4 {vr(FR,4)}, v4, s[40:43], s23 offen")
    a("s_lshl_b32 s23, s28, 8")
    a("s_lshl_b32 s22, s13, 2")
    a("s_add_u32 s23, s23, s22")
    a(f"s_add_u32 s23, s23, {WS_KF2}")
    a(f"v_lshlrev_b32 v{T}, 3, v2")
    a(f"v_lshl_add_u32 v{T}, v3, 30, v{T}")
    a(f"buffer_store_dword v{FR+4}, v{T}, s[40:43], s23 offen")
    a("s_endpgm")
    a.label("L_qkv_v")
    a("s_mov_b32 s20, 0x53800000")
    a("v_cmp_eq_u32 vcc, 18, v2")
    a(f"v_mov_b32 v{T+1}, 0x53805380")
    a(f"v_mul_u32_u24 v{T}, 304, v3")
    a(f"v_lshl_add_u32 v{T}, v2, 4, v{T}")
    for r in range(16): a(f"v_mul_f32 v{ACC+r}, s20, v{ACC+r}")
    for k in range(8): a(f"v_cvt_pk_bf16_f32 v{FR+k}, v{ACC+2*k}, v{ACC+2*k+1}")
    for k in range(8): a(f"v_cndmask_b32 v{FR+k}, v{FR+k}, v{T+1}, vcc")
    a("v_cmp_gt_u32 vcc, 19, v2")
    a(f"v_mov_b32 v{T+1}, {OOB}")
    a("s_mul_i32 s23, s21, 1216")
    a(f"s_add_u32 s23, s23, {WS_VF}")
    a(f"v_cndmask_b32 v{T}, v{T+1}, v{T}, vcc")
    a(f"buffer_store_dwordx4 {vr(FR,4)}, v{T}, s[40:43], s23 offen")
    a(f"buffer_store_dwordx4 {vr(FR+4,4)}, v{T}, s[40:43], s23 offen offset:608")
    a("s_endpgm")
```

```python
from asmlib import *
import gen_attn, gen_sg, gen_light as gl
HDR=open("concat_heads__grouped_kv_mqa__spectral_fnet__prompt.s.ref").read().split("; Override launch")[0]
def multi(name, roles, nv, lds, threads=256):
    a=Asm(); a.raw(kernel_header(name))
    tot=sum(c for c,_ in roles)
    for i,(c,fn) in enumerate(roles):
        a(f"s_cmp_lt_u32 s2, {c}")
        a(f"s_cbranch_scc1 L_{name}_r{i}")
        if i<len(roles)-1: a(f"s_sub_u32 s2, s2, {c}")
    a("s_endpgm")
    for i,(c,fn) in enumerate(roles):
        a.label(f"L_{name}_r{i}")
        fn(a)
    return a.text(), kernel_desc(name,nv), f"; @launch kernel={name} grid=({tot},1,1) block=({threads},1,1) lds={lds}"
def build():
    k1=multi("pre_kernel",[(256,gen_sg.role_qkv),gl.mk_fold(2),gl.mk_hid(2)],128,61440,320)
    ks1=multi("s1_kernel",[(180,gl.role_s1),(153,gl.role_seq)],176,0)
    k2=gen_attn.gen_attn("attn_kernel")
    k3=multi("post_kernel",[(144,gen_sg.mk_oproj(4,2,5)),(90,gl.role_s2)],176,122880,512)
    ks=[k1,k2,k3]
    return HDR+"\n".join(k[2] for k in ks)+"\n.amdgcn_target \"amdgcn-amd-amdhsa--gfx950\"\n.text\n"+"".join(k[0] for k in ks)+".section .rodata,\"a\"\n"+"".join(k[1] for k in ks)
if __name__=="__main__":
    import sys
    out=sys.argv[1] if len(sys.argv)>1 else "concat_heads__grouped_kv_mqa__spectral_fnet__prompt.s"
    open(out,"w").write(build())
```

```python
from asmlib import *
import gen_attn, gen_sg, gen_light as gl
HDR=open("concat_heads__grouped_kv_mqa__spectral_fnet__prompt.s.ref").read().split("; Override launch")[0]
def multi(name, roles, nv, lds, threads=256):
    a=Asm(); a.raw(kernel_header(name))
    tot=sum(c for c,_ in roles)
    for i,(c,fn) in enumerate(roles):
        a(f"s_cmp_lt_u32 s2, {c}")
        a(f"s_cbranch_scc1 L_{name}_r{i}")
        if i<len(roles)-1: a(f"s_sub_u32 s2, s2, {c}")
    a("s_endpgm")
    for i,(c,fn) in enumerate(roles):
        a.label(f"L_{name}_r{i}")
        fn(a)
    return a.text(), kernel_desc(name,nv), f"; @launch kernel={name} grid=({tot},1,1) block=({threads},1,1) lds={lds}"
WARM=None
def build():
    k1=multi("pre_kernel",[(256,gen_sg.role_qkv)]+([(8,gl.mk_warm(*WARM))] if WARM else [])+[gl.mk_fold(2),gl.mk_hid(2)],128,61440,320)
    ks1=multi("s1_kernel",[(180,gl.role_s1),(153,gl.role_seq)],176,0)
    k2=gen_attn.gen_attn("attn_kernel")
    k3=multi("post_kernel",[(144,gen_sg.mk_oproj(4,2,5)),(90,gl.role_s2)],176,122880,512)
    ks=[k1,k2,k3]
    return HDR+"\n".join(k[2] for k in ks)+"\n.amdgcn_target \"amdgcn-amd-amdhsa--gfx950\"\n.text\n"+"".join(k[0] for k in ks)+"L_code_end:\n.section .rodata,\"a\"\n"+"".join(k[1] for k in ks)
if __name__=="__main__":
    import sys
    out=sys.argv[1] if len(sys.argv)>1 else "concat_heads__grouped_kv_mqa__spectral_fnet__prompt.s"
    open(out,"w").write(build())
```

```python
from asmlib import *
from gen_gemm import common_ids, tr_lane_parts, perm5
T=120

WT=" nt"
def mk_fold(nw):
    nwg=(324+nw-1)//nw
    def role(a):
        L=8; U=40
        a("s_load_dwordx2 s[4:5], s[0:1], 40")
        a("s_load_dwordx2 s[6:7], s[0:1], 96")
        a("v_and_b32 v1, 63, v0")
        a("v_lshrrev_b32 v2, 6, v0")
        a("v_lshrrev_b32 v3, 2, v1")
        a("v_readfirstlane_b32 s12, v2")
        a("v_and_b32 v4, 3, v1")
        a(f"v_mov_b32 v7, {OOB}")
        a(f"s_mul_i32 s13, s2, {nw}")
        a("s_add_u32 s13, s13, s12")
        a(f"s_cmp_ge_u32 s12, {nw}")
        a("s_cbranch_scc1 L_fold_end")
        a("s_cmp_ge_u32 s13, 324")
        a("s_cbranch_scc1 L_fold_end")
        a(f"s_mul_hi_u32 s14, s13, {(2**32+8)//9}")
        a("s_mul_i32 s15, s14, 9")
        a("s_sub_u32 s15, s13, s15")
        a("s_and_b32 s16, s14, 1")
        a("s_lshr_b32 s17, s14, 1")
        a("s_lshl_b32 s18, s17, 5")
        a("s_add_u32 s18, s18, s16")
        a("v_lshl_add_u32 v2, v3, 1, s18")
        a("s_lshl_b32 s18, s15, 6")
        a("v_lshl_add_u32 v3, v4, 4, s18")
        a("v_mul_u32_u24 v4, 1152, v2")
        a(f"v_add_u32 v{T}, v4, v3")
        a(f"v_sub_u32 v{T+1}, v3, v4")
        a(f"v_add_u32 v{T+2}, {1024*1152}, v{T+1}")
        a(f"v_add_u32 v{T+1}, {2048*1152}, v{T+1}")
        a(f"v_add_u32 v{T+3}, {1024*1152}, v{T}")
        a("v_cmp_lt_u32 vcc, 512, v2")
        a("s_movk_i32 s19, 512")
        a("v_cmp_le_u32 s[20:21], s19, v2")
        a("v_cmp_eq_u32 s[22:23], 0, v2")
        a("s_lshl_b32 s19, s12, 13")
        a("s_movk_i32 s24, 576")
        a("s_waitcnt lgkmcnt(0)")
        srd(a,8,4,2359296)
        a(f"v_cndmask_b32 v{T}, v{T}, v7, vcc")
        a(f"v_cndmask_b32 v{T+1}, v{T+1}, v7, vcc")
        a(f"v_cndmask_b32 v{T+2}, v{T+2}, v7, s[20:21]")
        a(f"v_cndmask_b32 v{T+3}, v{T+3}, v7, s[20:21]")
        a(f"v_cndmask_b32 v{T+3}, v{T+3}, v7, s[22:23]")
        for r in range(4):
            for hf in range(2):
                a(f"s_add_u32 m0, s19, {1024*(2*r+hf)}")
                a("s_nop 0")
                a(f"buffer_load_dwordx4 v{T+r}, s[8:11], {'s24' if hf else '0'} offen lds")
        srd(a,32,6,WS_END)
        a(f"v_and_b32 v{T+6}, 15, v1")
        perm5(a,T+4,T+6,T+5)
        a(f"v_lshrrev_b32 v{T+5}, 4, v1")
        a(f"v_lshl_add_u32 v6, v{T+4}, 2, v{T+5}")
        a("v_lshlrev_b32 v6, 4, v6")
        a("v_add_u32 v6, s19, v6")
        a(f"v_lshlrev_b32 v5, 9, v{T+5}")
        a(f"v_lshl_add_u32 v5, v{T+6}, 4, v5")
        a("s_mul_i32 s25, s16, 9")
        a("s_lshr_b32 s26, s17, 1")
        a("s_add_u32 s25, s25, s26")
        a("s_mul_i32 s25, s25, 18432")
        a("s_lshl_b32 s26, s15, 11")
        a("s_add_u32 s25, s25, s26")
        a("s_and_b32 s26, s17, 1")
        a("s_lshl_b32 s26, s26, 8")
        a("s_add_u32 s25, s25, s26")
        a("s_waitcnt vmcnt(0)")
        for k in range(8): a(f"ds_read_b128 {vr(L+4*k,4)}, v6 offset:{1024*k}")
        a("s_waitcnt lgkmcnt(0)")
        OUT=U+48
        for dw in range(4):
            res={}
            for part in range(2):
                x={}
                for r in range(4):
                    for hf in range(2):
                        d=U+16*part+2*r+hf; src=L+8*r+4*hf+dw
                        if part==0: a(f"v_lshlrev_b32 v{d}, 16, v{src}")
                        else: a(f"v_and_b32 v{d}, 0xffff0000, v{src}")
                        x[r,hf]=d
                eo={}
                for r in range(4):
                    e=U+16*part+8+2*r; o=e+1
                    a(f"v_add_f32 v{e}, v{x[r,0]}, v{x[r,1]}")
                    a(f"v_sub_f32 v{o}, v{x[r,0]}, v{x[r,1]}")
                    eo[r,0]=e; eo[r,1]=o
                for par in range(2):
                    b=U+16*part+4*par
                    a(f"v_add_f32 v{b}, v{eo[0,par]}, v{eo[1,par]}")
                    a(f"v_sub_f32 v{b+1}, v{eo[0,par]}, v{eo[1,par]}")
                    a(f"v_add_f32 v{b+2}, v{eo[2,par]}, v{eo[3,par]}")
                    a(f"v_sub_f32 v{b+3}, v{eo[2,par]}, v{eo[3,par]}")
                    f=U+32+8*part+4*par
                    a(f"v_add_f32 v{f}, v{b}, v{b+2}")
                    a(f"v_sub_f32 v{f+1}, v{b}, v{b+2}")
                    a(f"v_sub_f32 v{f+2}, v{b+1}, v{b+3}")
                    a(f"v_add_f32 v{f+3}, v{b+1}, v{b+3}")
                    for c in range(4): res[part,par,c]=f+c
            for c in range(4):
                for par in range(2):
                    a(f"v_cvt_pk_bf16_f32 v{OUT+4*(2*c+par)+dw}, v{res[0,par,c]}, v{res[1,par,c]}")
        for c in range(4):
            for par in range(2):
                a(f"s_add_u32 s20, s25, {WS_XF+(2*c+par)*18*18432}")
                a(f"buffer_store_dwordx4 {vr(OUT+4*(2*c+par),4)}, v5, s[32:35], s20 offen{WT}")
        a.label("L_fold_end")
        a("s_endpgm")
    return nwg,role

def mk_hid(nw):
    ntask=60; upw=3
    def role(a):
        a(f"s_load_dwordx4 s[36:39], s[0:1], 64")
        a("s_load_dwordx2 s[6:7], s[0:1], 96")
        common_ids(a)
        a(f"v_lshrrev_b32 v{T}, 2, v1")
        a(f"v_and_b32 v{T+1}, 3, v1")
        a(f"s_mul_i32 s13, s2, {nw}")
        a("s_add_u32 s13, s13, s12")
        a(f"s_cmp_ge_u32 s12, {nw}")
        a(f"s_cbranch_scc1 L_hid_end")
        a(f"s_cmp_ge_u32 s13, {ntask}")
        a(f"s_cbranch_scc1 L_hid_end")
        a(f"s_mul_hi_u32 s14, s13, {(2**32+2)//3}")
        a(f"s_mul_i32 s17, s14, 3")
        a("s_sub_u32 s17, s13, s17")
        a(f"s_mul_hi_u32 s15, s14, {(2**32+4)//5}")
        a("s_mul_i32 s16, s15, 5")
        a("s_sub_u32 s16, s14, s16")
        a("s_lshl_b32 s16, s16, 6")
        a("s_and_b32 s23, s15, 1")
        a("s_add_u32 s16, s16, s23")
        a(f"v_mul_u32_u24 v{T+2}, 2304, v{T}")
        a(f"v_lshl_add_u32 v{T+2}, v{T+1}, 4, v{T+2}")
        a(f"v_lshlrev_b32 v{T+3}, 9, v{T+1}")
        a(f"v_lshl_add_u32 v{T+3}, v{T}, 4, v{T+3}")
        a(f"s_mul_i32 s19, s16, 1152")
        a(f"s_mul_i32 s20, s17, 192")
        a("s_add_u32 s19, s19, s20")
        a(f"s_add_u32 s20, s19, {32*1152}")
        a(f"s_mul_i32 s21, s13, 6144")
        a(f"s_add_u32 s21, s21, {WS_HID}")
        a("s_waitcnt lgkmcnt(0)")
        a("s_cmp_ge_u32 s15, 2")
        a("s_cselect_b32 s4, s38, s36")
        a("s_cselect_b32 s5, s39, s37")
        srd(a,8,4,663552)
        srd(a,32,6,WS_END)
        for u in range(upw):
            for g in range(2):
                a(f"buffer_load_dwordx4 {vr(8+8*u+4*g,4)}, v{T+2}, s[8:11], s{19+g} offen offset:{64*u}")
        for u in range(upw):
            for g in range(2):
                a(f"s_waitcnt vmcnt({2*upw-1})")
                a(f"buffer_store_dwordx4 {vr(8+8*u+4*g,4)}, v{T+3}, s[32:35], s21 offen offset:{256*g}{WT}")
            a("s_add_u32 s21, s21, 2048")
        a.label(f"L_hid_end")
        a("s_endpgm")
    return (ntask+nw-1)//nw, role

def role_wot(a):
    a("s_load_dwordx2 s[6:7], s[0:1], 32")
    a("s_load_dwordx2 s[36:37], s[0:1], 96")
    common_ids(a)
    tr_lane_parts(a,T)
    a("s_cmp_ge_u32 s12, 4")
    a("s_cbranch_scc1 L_wot_end")
    a(f"v_lshrrev_b32 v{T+2}, 3, v1")
    a(f"v_mul_u32_u24 v{T+2}, 1152, v{T+2}")
    a(f"v_and_b32 v{T+4}, 7, v1")
    a(f"v_lshl_add_u32 v{T+2}, v{T+4}, 4, v{T+2}")
    a(f"s_mul_i32 s15, s12, 18432")
    a(f"s_mul_i32 s16, s12, {144*1152}")
    a("s_lshl_b32 s17, s2, 7")
    a("s_add_u32 s16, s16, s17")
    a("s_waitcnt lgkmcnt(0)")
    srd(a,28,6,663552)
    srd(a,32,36,WS_END)
    for i in range(18):
        a(f"s_add_u32 m0, s15, {1024*i}")
        a(f"s_add_u32 s21, s16, {9216*i}")
        a(f"buffer_load_dwordx4 v{T+2}, s[28:31], s21 offen lds")
    a(f"v_lshl_add_u32 v{T+4}, v3, 3, v5")
    a(f"v_lshlrev_b32 v{T+4}, 7, v{T+4}")
    a(f"v_lshl_add_u32 v{T+4}, v6, 3, v{T+4}")
    a(f"v_add_u32 v{T+4}, s15, v{T+4}")
    a(f"v_lshrrev_b32 v{T+5}, 1, v5")
    a(f"v_lshl_add_u32 v{T+5}, v3, 2, v{T+5}")
    a(f"v_mul_u32_u24 v{T+5}, 18, v{T+5}")
    a(f"v_and_b32 v{T+6}, 1, v5")
    a(f"v_add3_u32 v{T+5}, v{T+5}, v{T+6}, 16")
    a(f"v_lshlrev_b32 v{T+5}, 7, v{T+5}")
    a(f"v_lshl_add_u32 v{T+5}, v6, 3, v{T+5}")
    a(f"v_add_u32 v{T+5}, s15, v{T+5}")
    a("s_waitcnt vmcnt(0)")
    for t in range(2):
        for c in range(9):
            for u in range(2):
                d=8+4*(9*t+c)+2*u
                if c<8: a(f"ds_read_b64_tr_b16 {vr(d,2)}, v{T+4} offset:{c*18*128+u*512+t*64}")
                else: a(f"ds_read_b64_tr_b16 {vr(d,2)}, v{T+5} offset:{u*36*128+t*64}")
    a("s_lshl_b32 s20, s2, 1")
    a(f"s_mul_i32 s20, s20, 36864")
    a(f"s_add_u32 s20, s20, {WS_WOT}")
    a("s_lshl_b32 s21, s12, 13")
    a("s_add_u32 s21, s21, s20")
    a("s_lshl_b32 s22, s12, 10")
    a("s_add_u32 s22, s22, s20")
    a("s_add_u32 s22, s22, 32768")
    a("s_waitcnt lgkmcnt(0)")
    for t in range(2):
        for c in range(9):
            d=8+4*(9*t+c)
            if c<8:
                a(f"s_add_u32 s23, s21, {t*36864+(c>>2)*4096}")
                a(f"buffer_store_dwordx4 {vr(d,4)}, v4, s[32:35], s23 offen offset:{(c&3)*1024}")
            else:
                a(f"s_add_u32 s23, s22, {t*36864}")
                a(f"buffer_store_dwordx4 {vr(d,4)}, v4, s[32:35], s23 offen")
    a.label("L_wot_end")
    a("s_endpgm")

def s1_decode(a, st, sA, sB, sO, vO, vt, tmp):
    t0,t1,t2,t3,t4=tmp
    a(f"s_mul_hi_u32 s{t0}, s{st}, {(2**32+4)//5}")
    a(f"s_mul_i32 s{t1}, s{t0}, 5")
    a(f"s_sub_u32 s{t1}, s{st}, s{t1}")
    a(f"s_mul_i32 s{sA}, s{t0}, 18432")
    a(f"s_add_u32 s{sA}, s{sA}, {WS_XF}")
    a(f"s_mul_hi_u32 s{t2}, s{t0}, {(2**32+8)//9}")
    a(f"s_mul_i32 s{t3}, s{t2}, 9")
    a(f"s_sub_u32 s{t3}, s{t0}, s{t3}")
    a(f"s_bfe_u32 s{t4}, s{t2}, 0x10001")
    a(f"s_lshr_b32 s{sB}, s{t2}, 3")
    a(f"s_lshl_b32 s{sB}, s{sB}, 1")
    a(f"s_add_u32 s{sB}, s{sB}, s{t4}")
    a(f"s_mul_i32 s{sB}, s{sB}, 5")
    a(f"s_add_u32 s{sB}, s{sB}, s{t1}")
    a(f"s_mul_i32 s{sB}, s{sB}, 18432")
    a(f"s_add_u32 s{sB}, s{sB}, {WS_HID}")
    a(f"s_lshr_b32 s{sO}, s{t2}, 2")
    a(f"s_lshl_b32 s{sO}, s{sO}, 1")
    a(f"s_and_b32 s{t0}, s{t2}, 1")
    a(f"s_add_u32 s{sO}, s{sO}, s{t0}")
    a(f"s_mul_i32 s{sO}, s{sO}, 5")
    a(f"s_add_u32 s{sO}, s{sO}, s{t1}")
    a(f"s_mul_i32 s{sO}, s{sO}, 36864")
    a(f"s_lshl_b32 s{t3}, s{t3}, 11")
    a(f"s_add_u32 s{sO}, s{sO}, s{t3}")
    a(f"s_add_u32 s{sO}, s{sO}, {WS_A1T}")
    v0,v1=vt
    a(f"s_lshl_b32 s{t4}, s{t4}, 8")
    a(f"s_add_u32 s{sO}, s{sO}, s{t4}")
    a(f"v_and_b32 v{vO}, 15, v2")
    a(f"v_lshlrev_b32 v{vO}, 4, v{vO}")
    a(f"v_lshl_add_u32 v{vO}, v3, 9, v{vO}")
    a(f"v_lshrrev_b32 v{v0}, 4, v2")
    a(f"v_mul_u32_u24 v{v0}, 18432, v{v0}")
    a(f"v_add_u32 v{vO}, v{vO}, v{v0}")

def role_s1(a):
    A=8; B=80; D=152; T=168
    a("s_load_dwordx2 s[6:7], s[0:1], 96")
    common_ids(a)
    a("s_nop 2")
    a("s_lshl_b32 s13, s2, 2")
    a("s_add_u32 s13, s13, s12")
    s1_decode(a,13,18,19,22,T,(T+1,T+2),(14,15,16,17,20))
    a("s_waitcnt lgkmcnt(0)")
    srd(a,32,6,WS_END)
    for ks in range(18):
        a(f"buffer_load_dwordx4 {vr(A+4*ks,4)}, v4, s[32:35], s18 offen offset:{1024*(ks&3)}")
        a(f"buffer_load_dwordx4 {vr(B+4*ks,4)}, v4, s[32:35], s19 offen offset:{1024*(ks&3)}")
        if (ks&3)==3:
            a("s_add_u32 s18, s18, 4096"); a("s_add_u32 s19, s19, 4096")
    for ks in range(18):
        a(f"s_waitcnt vmcnt({2*(17-ks)})")
        a(f"v_mfma_f32_32x32x16_bf16 {vr(D,16)}, {vr(A+4*ks,4)}, {vr(B+4*ks,4)}, {'0' if ks==0 else vr(D,16)}")
    a("s_nop 11")
    for k in range(8): a(f"v_cvt_pk_bf16_f32 v{A+k}, v{D+2*k}, v{D+2*k+1}")
    a(f"buffer_store_dwordx4 {vr(A,4)}, v{T}, s[32:35], s22 offen")
    a(f"buffer_store_dwordx4 {vr(A+4,4)}, v{T}, s[32:35], s22 offen offset:1024")
    a("s_endpgm")

def seq_decode(a, sTile, sTrig, sKs, sL, sO, tmp):
    t0,t1=tmp
    a(f"s_cmp_ge_u32 s{sTile}, 10")
    a(f"s_cselect_b32 s{t0}, 1, 0")
    a(f"s_mul_i32 s{t1}, s{t0}, 10")
    a(f"s_sub_u32 s{t1}, s{sTile}, s{t1}")
    a(f"s_lshl_b32 s{t1}, s{t1}, 6")
    a(f"s_add_u32 s{t1}, s{t1}, s{t0}")
    a(f"s_lshl_b32 s{sL}, s{t1}, 12")
    a(f"s_lshl_b32 s{t0}, s{sKs}, 6")
    a(f"s_add_u32 s{sL}, s{sL}, s{t0}")
    a(f"s_mul_i32 s{sO}, s{sTrig}, 18")
    a(f"s_add_u32 s{sO}, s{sO}, s{sTile}")
    a(f"s_mul_i32 s{sO}, s{sO}, 34816")
    a(f"s_lshl_b32 s{t0}, s{sKs}, 10")
    a(f"s_add_u32 s{sO}, s{sO}, s{t0}")
    a(f"s_add_u32 s{sO}, s{sO}, {WS_SEQ}")

def role_seq(a):
    a("s_load_dwordx4 s[36:39], s[0:1], 48")
    a("s_load_dwordx2 s[6:7], s[0:1], 96")
    common_ids(a)
    a("s_nop 2")
    a("s_lshl_b32 s13, s2, 2")
    a("s_add_u32 s13, s13, s12")
    a(f"s_mul_hi_u32 s14, s13, {(2**32+16)//17}")
    a("s_mul_i32 s15, s14, 17")
    a("s_sub_u32 s15, s13, s15")
    a("s_cmp_ge_u32 s14, 18")
    a("s_cselect_b32 s16, 1, 0")
    a("s_mul_i32 s17, s16, 18")
    a("s_sub_u32 s17, s14, s17")
    seq_decode(a,17,16,15,18,19,(20,21))
    a("v_lshlrev_b32 v5, 13, v2")
    a("v_lshl_add_u32 v5, v3, 5, v5")
    a("s_mov_b32 s22, 0x05040100")
    a("s_mov_b32 s23, 0x07060302")
    a("s_add_u32 s20, s19, 17408")
    a("s_waitcnt lgkmcnt(0)")
    a("s_cmp_eq_u32 s16, 1")
    a("s_cselect_b32 s4, s38, s36")
    a("s_cselect_b32 s5, s39, s37")
    srd(a,8,4,8388608)
    srd(a,32,6,WS_END)
    a("buffer_load_dwordx4 v[8:11], v5, s[8:11], s18 offen")
    a("buffer_load_dwordx4 v[12:15], v5, s[8:11], s18 offen offset:16")
    a("s_waitcnt vmcnt(0)")
    for k in range(4):
        a(f"v_perm_b32 v{16+k}, v{9+2*k}, v{8+2*k}, s22")
        a(f"v_perm_b32 v{20+k}, v{9+2*k}, v{8+2*k}, s23")
    a("buffer_store_dwordx4 v[16:19], v4, s[32:35], s19 offen")
    a("buffer_store_dwordx4 v[20:23], v4, s[32:35], s20 offen")
    a("s_endpgm")

def role_s2(a):
    A=8; B=76; D=144; T=160; RB=69632
    a("s_load_dwordx2 s[6:7], s[0:1], 96")
    a("s_load_dwordx2 s[40:41], s[0:1], 80")
    common_ids(a)
    a("s_and_b32 s13, s2, 7")
    a("s_lshr_b32 s14, s2, 3")
    a("s_sub_u32 s15, s2, 80")
    a("s_cmp_ge_u32 s2, 80")
    a("s_cselect_b32 s13, 8, s13")
    a("s_cselect_b32 s14, s15, s14")
    a("s_cmp_ge_u32 s13, 5")
    a("s_cselect_b32 s15, 1, 0")
    a("s_mul_i32 s16, s15, 5")
    a("s_sub_u32 s16, s13, s16")
    a("s_lshl_b32 s16, s16, 7")
    a("s_add_u32 s16, s16, s15")
    a("s_bfe_u32 s17, s12, 0x10001")
    a("s_and_b32 s18, s12, 1")
    a("s_lshr_b32 s28, s12, 2")
    a("s_lshl_b32 s19, s17, 1")
    a("s_add_u32 s19, s19, s15")
    a("s_lshl_b32 s19, s19, 1")
    a("s_add_u32 s19, s19, s18")
    a("s_mul_i32 s19, s19, 10")
    a("s_add_u32 s19, s19, s14")
    a("s_mul_i32 s19, s19, 18432")
    a("s_lshl_b32 s20, s28, 13")
    a("s_add_u32 s19, s19, s20")
    a(f"s_add_u32 s19, s19, {WS_A1T}")
    a("s_and_b32 s21, s12, 3")
    a("s_mul_i32 s21, s21, 17408")
    a("s_add_u32 s22, s21, s20")
    a("s_mul_i32 s23, s17, 18")
    a("s_lshl_b32 s24, s13, 1")
    a("s_add_u32 s23, s23, s24")
    a("s_add_u32 s23, s23, s28")
    a("s_lshl_b32 s23, s23, 1")
    a("s_add_u32 s23, s23, s18")
    a("s_mul_i32 s23, s23, 17408")
    a(f"s_add_u32 s23, s23, {WS_SEQ}")
    perm5(a,5,2,6)
    a("v_and_b32 v6, 1, v5")
    a("v_lshrrev_b32 v5, 1, v5")
    a("v_lshlrev_b32 v5, 4, v5")
    a("v_lshl_add_u32 v5, v6, 8, v5")
    a("v_lshl_add_u32 v5, v3, 9, v5")
    a("v_add_u32 v5, s21, v5")
    a("s_waitcnt lgkmcnt(0)")
    srd(a,32,6,WS_END)
    for i in range(9):
        a(f"s_add_u32 m0, s22, {1024*i}")
        a(f"s_add_u32 s24, s19, {1024*i}")
        a(f"buffer_load_dwordx4 v4, s[32:35], s24 offen lds")
    for ks in range(17):
        a(f"buffer_load_dwordx4 {vr(B+4*ks,4)}, v4, s[32:35], s23 offen offset:{1024*(ks&3)}")
        if (ks&3)==3: a("s_add_u32 s23, s23, 4096")
    srd(a,44,40,4718592)
    a("s_waitcnt vmcnt(17)")
    a("s_barrier")
    for ks in range(17): a(f"ds_read_b128 {vr(A+4*ks,4)}, v5 offset:{1024*ks}")
    a("s_lshl_b32 s23, s28, 6")
    a("s_add_u32 s23, s23, s16")
    a(f"v_lshl_add_u32 v{T+1}, v2, 1, s23")
    a(f"v_sub_u32 v{T+2}, 1024, v{T+1}")
    a("s_cmp_eq_u32 s17, 1")
    a("s_cselect_b64 vcc, -1, 0")
    a("s_cselect_b32 s29, -1.0, 1.0")
    a("s_sub_u32 s25, 512, s17")
    a(f"v_cndmask_b32 v{T+11}, v{T+1}, v{T+2}, vcc")
    a("s_lshl_b32 s24, s14, 5")
    a("s_lshl_b32 s26, s18, 4")
    a("s_add_u32 s24, s24, s26")
    a(f"v_lshl_add_u32 v{T+2}, v3, 3, s24")
    a(f"v_mul_u32_u24 v{T+3}, 2304, v{T+11}")
    a(f"v_sub_u32 v{T+4}, {2048*2304}, v{T+3}")
    a(f"v_mov_b32 v{T+5}, {OOB}")
    a(f"v_cmp_lt_u32 vcc, s25, v{T+1}")
    a(f"v_add_u32 v{T+6}, -1, v{T+11}")
    a("s_movk_i32 s25, 1023")
    a(f"v_cmp_le_u32 s[26:27], s25, v{T+6}")
    a(f"v_lshlrev_b32 v{T+6}, 1, v{T+2}")
    a(f"v_cndmask_b32 v{T+3}, v{T+3}, v{T+5}, vcc")
    a(f"v_cndmask_b32 v{T+4}, v{T+4}, v{T+5}, vcc")
    a(f"v_cndmask_b32 v{T+4}, v{T+4}, v{T+5}, s[26:27]")
    a(f"v_add_u32 v{T+7}, v{T+3}, v{T+6}")
    a(f"v_add_u32 v{T+8}, v{T+4}, v{T+6}")
    a(f"v_sub_u32 v{T+6}, {1152+(576-7)*2}, v{T+6}")
    a(f"v_add_u32 v{T+9}, v{T+3}, v{T+6}")
    a(f"v_add_u32 v{T+10}, v{T+4}, v{T+6}")
    a("s_lshl_b32 s23, s12, 12")
    a(f"s_add_u32 s23, s23, {RB}")
    a("v_add_u32 v7, s23, v4")
    a("s_lshl_b32 s23, s28, 14")
    a("s_lshl_b32 s26, s18, 11")
    a("s_add_u32 s23, s23, s26")
    a(f"s_add_u32 s23, s23, {RB}")
    a(f"v_add_u32 v{T}, s23, v4")
    for ks in range(17):
        a(f"s_waitcnt vmcnt({16-ks}) lgkmcnt({min(15,16-ks)})")
        a(f"v_mfma_f32_32x32x16_bf16 {vr(D,16)}, {vr(A+4*ks,4)}, {vr(B+4*ks,4)}, {'0' if ks==0 else vr(D,16)}")
    a("s_nop 11")
    for i in range(4): a(f"ds_write_b128 v7, {vr(D+4*i,4)} offset:{1024*i}")
    a("s_waitcnt lgkmcnt(0)")
    a("s_barrier")
    L=8
    for ty in range(4):
        for qd in range(2):
            a(f"ds_read_b128 {vr(L+8*ty+4*qd,4)}, v{T} offset:{4096*ty+1024*qd}")
    a("s_waitcnt lgkmcnt(4)")
    for r in range(8): a(f"v_fma_f32 v{L+r}, v{L+8+r}, s29, v{L+r}")
    a("s_waitcnt lgkmcnt(0)")
    for r in range(8): a(f"v_fma_f32 v{L+16+r}, v{L+16+r}, s29, v{L+24+r}")
    for r in range(8): a(f"v_sub_f32 v{L+32+r}, v{L+r}, v{L+16+r}")
    for r in range(8): a(f"v_add_f32 v{L+40+r}, v{L+r}, v{L+16+r}")
    M=L+32; Pl=L+40; O=L+48
    for k in range(4): a(f"v_cvt_pk_bf16_f32 v{O+k}, v{M+2*k}, v{M+2*k+1}")
    for k in range(4): a(f"v_cvt_pk_bf16_f32 v{O+4+k}, v{Pl+2*k}, v{Pl+2*k+1}")
    for k in range(4): a(f"v_cvt_pk_bf16_f32 v{O+8+k}, v{Pl+7-2*k}, v{Pl+6-2*k}")
    for k in range(4): a(f"v_cvt_pk_bf16_f32 v{O+12+k}, v{M+7-2*k}, v{M+6-2*k}")
    a("s_cmp_eq_u32 s14, 9")
    a("s_cbranch_scc1 L_s2_e288")
    a(f"buffer_store_dwordx4 {vr(O,4)}, v{T+7}, s[44:47], 0 offen offset:1152")
    a(f"buffer_store_dwordx4 {vr(O+4,4)}, v{T+8}, s[44:47], 0 offen offset:1152")
    a("s_cmp_eq_u32 s24, 0")
    a("s_cbranch_scc1 L_s2_e0")
    a(f"buffer_store_dwordx4 {vr(O+8,4)}, v{T+9}, s[44:47], 0 offen")
    a(f"buffer_store_dwordx4 {vr(O+12,4)}, v{T+10}, s[44:47], 0 offen")
    a("s_endpgm")
    a.label("L_s2_e0")
    a(f"buffer_store_dwordx3 {vr(O+8,3)}, v{T+9}, s[44:47], 0 offen")
    a(f"buffer_store_dwordx3 {vr(O+12,3)}, v{T+10}, s[44:47], 0 offen")
    a(f"buffer_store_short v{O+11}, v{T+9}, s[44:47], 0 offen offset:12")
    a(f"buffer_store_short v{O+15}, v{T+10}, s[44:47], 0 offen offset:12")
    a("s_mov_b32 exec_lo, 0")
    a(f"buffer_store_short_d16_hi v{O+11}, v{T+9}, s[44:47], 0 offen offset:14")
    a(f"buffer_store_short_d16_hi v{O+15}, v{T+10}, s[44:47], 0 offen offset:14")
    a("s_endpgm")
    a.label("L_s2_e288")
    a("s_cmp_lg_u32 s18, 0")
    a("s_cbranch_scc1 L_s2_end")
    a("s_mov_b32 exec_hi, 0")
    a(f"buffer_store_short v{O}, v{T+7}, s[44:47], 0 offen offset:1152")
    a(f"buffer_store_short v{O+4}, v{T+8}, s[44:47], 0 offen offset:1152")
    a.label("L_s2_end")
    a("s_endpgm")

def mk_warm(code=True, tlb=True, stride=4096):
    def role(a):
        a("s_load_dwordx4 s[36:39], s[0:1], 48")
        a("s_load_dwordx2 s[40:41], s[0:1], 80")
        a("s_load_dwordx2 s[42:43], s[0:1], 96")
        a("s_load_dwordx2 s[44:45], s[0:1], 32")
        if code:
            a("s_getpc_b64 s[4:5]")
            a.label("L_warm_pc")
            a("s_add_u32 s4, s4, attn_kernel-L_warm_pc")
            a("s_addc_u32 s5, s5, 0")
            a("s_mov_b32 s6, L_code_end-attn_kernel")
            a("s_mov_b32 s7, 0x00020000")
            a("v_lshlrev_b32 v1, 4, v0")
            for k in range(6):
                a("buffer_load_dwordx4 v[8:11], v1, s[4:7], 0 offen")
                a("v_add_u32 v1, 5120, v1")
        if tlb:
            a(f"v_mul_u32_u24 v2, {stride}, v0")
            a("s_waitcnt lgkmcnt(0)")
            for base,nbytes in ((42,WS_END),(40,4718592),(36,600*4096),(38,600*4096),(44,663552)):
                srd(a,8,base,nbytes)
                a("s_mov_b32 s12, 0")
                for k in range((nbytes+320*stride-1)//(320*stride)):
                    a("buffer_load_dword v12, v2, s[8:11], s12 offen")
                    a(f"s_add_u32 s12, s12, {320*stride}")
        a("s_endpgm")
    return role
```

```python
import re,sys
def instrument(txt, base=0xD00000):
    out=[]; kidx=-1; cur=None
    lines=txt.split("\n")
    names=re.findall(r"@launch kernel=(\w+)",txt)
    global NV
    NV={m[0]:1 for m in re.findall(r"\.amdhsa_kernel (\w+)\n\s+\.amdhsa_next_free_vgpr (\d+)",txt)}
    for l in lines:
        m=re.match(r"^(\w+_kernel):$",l)
        if m:
            if cur: out+=tail(cur,kidx,base)
            cur=m.group(1); kidx=names.index(cur)
            out.append('.p2align 8'); out.append(l)
            out+=["    s_memrealtime s[80:81]","    s_mov_b32 s90, s2","    s_load_dwordx2 s[94:95], s[0:1], 96",f"    v_lshrrev_b32 v{NV[cur]+1}, 6, v0","    s_nop 0",f"    v_readfirstlane_b32 s91, v{NV[cur]+1}",
                  "    s_mov_b64 s[82:83], 0","    s_mov_b64 s[84:85], 0","    s_mov_b64 s[86:87], 0", "    s_waitcnt lgkmcnt(0)"]
            continue
        m=re.match(r"^\s*; STAMP (\d)",l)
        if m:
            k=int(m.group(1)); out.append(f"    s_memrealtime s[{80+2*k}:{81+2*k}]"); continue
        if l.strip()=="s_endpgm":
            out.append(f"    s_branch L_instr_{cur}"); continue
        if l.startswith(".section .rodata"):
            out+=tail(cur,kidx,base); cur=None
        l=re.sub(r"next_free_sgpr \d+","next_free_sgpr 100",l)
        out.append(l)
    return "\n".join(out)
def tail(cur,kidx,base):
    o=[f"L_instr_{cur}:","    s_mov_b64 exec, -1","    s_waitcnt vmcnt(0) lgkmcnt(0)","    s_memrealtime s[88:89]","    s_waitcnt lgkmcnt(0)",
       "    s_lshl_b32 s92, s90, 3","    s_add_u32 s92, s92, s91","    s_lshl_b32 s92, s92, 5",f"    s_add_u32 s92, s92, {base+kidx*0x40000}",
       f"    v_mov_b32 v{NV[cur]}, s92"]
    for i in range(5):
        o+=[f"    v_mov_b32 v{NV[cur]+1}, s{80+2*i}",f"    global_store_dword v{NV[cur]}, v{NV[cur]+1}, s[94:95] offset:{4*i}"]
    o+=["    s_endpgm"]
    return o
if __name__=="__main__":
    src=sys.argv[1]; dst=sys.argv[2]
    open(dst,"w").write(instrument(open(src).read()))
```

```python
from asmlib import *
from instr import instrument
FL=0x400000; DATA=0x500000
def gen(name,grp,st,ld,fs=2,sleep=False):
    a=Asm(); a.raw(kernel_header(name))
    a("s_load_dwordx2 s[4:5], s[0:1], 96")
    a("v_and_b32 v1, 63, v0"); a("v_lshrrev_b32 v2, 6, v0"); a("v_lshlrev_b32 v4, 4, v1"); a("v_readfirstlane_b32 s12, v2")
    a("s_waitcnt lgkmcnt(0)")
    srd(a,8,4,0x1000000)
    a("v_mov_b32 v5, 0")
    a("buffer_load_dword v6, v5, s[8:11], 0 offen sc0 sc1")
    if grp=="xcd":
        a("s_and_b32 s13, s2, 7"); a("s_lshl_b32 s13, s13, 2"); a("s_lshr_b32 s14, s2, 6"); a("s_add_u32 s13, s13, s14"); a("s_bfe_u32 s14, s2, 0x30003")
    else:
        a("s_lshr_b32 s13, s2, 3"); a("s_and_b32 s14, s2, 7")
    a("s_waitcnt vmcnt(0)")
    a("v_add_u32 v6, 1, v6")
    a("s_mov_b32 s21, 300")
    a.label(f"W_{name}_x")
    for i in range(8): a("v_add3_u32 v10, v2, v3, v4")
    a("s_sub_u32 s21, s21, 1"); a("s_cmp_lg_u32 s21, 0"); a(f"s_cbranch_scc1 W_{name}_x")
    a("s_barrier")
    a("; STAMP 1")
    a("s_mul_i32 s15, s13, 73728"); a(f"s_add_u32 s15, s15, {DATA}")
    a("s_lshl_b32 s16, s14, 3"); a("s_add_u32 s16, s16, s12"); a("s_lshl_b32 s16, s16, 10"); a("s_add_u32 s16, s16, s15")
    a("v_lshlrev_b32 v7, 4, v1")
    a(f"buffer_store_dwordx4 v[8:11], v7, s[8:11], s16 offen{st}")
    a("s_waitcnt vmcnt(0)")
    a("; STAMP 3")
    a("s_barrier")
    a("s_cmp_lg_u32 s12, 0"); a(f"s_cbranch_scc1 P_{name}_x")
    a(f"s_lshl_b32 s17, s13, {max(7,fs+3)}"); a(f"s_add_u32 s17, s17, {FL}")
    a(f"s_lshl_b32 s18, s14, {fs}"); a("s_add_u32 s18, s18, s17")
    a("s_mov_b64 exec, 1")
    a("buffer_store_dword v6, v5, s[8:11], s18 offen sc0 sc1")
    a("s_mov_b64 exec, 0xff")
    a(f"v_lshlrev_b32 v12, {fs}, v1")
    a("s_mov_b32 s21, 20000")
    a.label(f"S_{name}_x")
    if sleep: a("s_sleep 2")
    a("buffer_load_dword v13, v12, s[8:11], s17 offen sc0 sc1")
    a("s_waitcnt vmcnt(0)")
    a("v_cmp_ne_u32 vcc, v13, v6")
    a("s_sub_u32 s21, s21, 1"); a("s_cmp_eq_u32 s21, 0"); a(f"s_cbranch_scc1 Q_{name}_x")
    a(f"s_cbranch_vccnz S_{name}_x")
    a.label(f"Q_{name}_x")
    a("s_mov_b64 exec, -1")
    a.label(f"P_{name}_x")
    a("s_barrier")
    a("; STAMP 2")
    a("s_mul_i32 s16, s12, 9216"); a("s_add_u32 s16, s16, s15")
    for i in range(9):
        a(f"buffer_load_dwordx4 {vr(16+4*i,4)}, v4, s[8:11], s16 offen offset:{1024*(i&3)}{ld}")
        if (i&3)==3: a("s_add_u32 s16, s16, 4096")
    a("s_waitcnt vmcnt(0)")
    a("s_cmp_lg_u32 s2, 0"); a(f"s_cbranch_scc1 E_{name}_x"); a("s_cmp_lg_u32 s12, 0"); a(f"s_cbranch_scc1 E_{name}_x")
    a("s_mov_b64 exec, 1")
    a("buffer_store_dword v6, v5, s[8:11], 0 offen sc0 sc1")
    a.label(f"E_{name}_x")
    a("s_endpgm")
    return a.text(),kernel_desc(name,64),f"; @launch kernel={name} grid=(256,1,1) block=(512,1,1) lds=100000"
ks=[gen("y1_kernel","xcd"," sc1"," sc1",7),gen("y2_kernel","xcd"," sc1"," sc1",7,True),gen("y3_kernel","xcd"," sc1"," sc1",2,True),gen("y4_kernel","lin"," sc1"," sc1",7),gen("y5_kernel","xcd"," sc1"," sc1",8,True)]
txt="\n".join(k[2] for k in ks)+"\n.amdgcn_target \"amdgcn-amd-amdhsa--gfx950\"\n.text\n"+"".join(k[0] for k in ks)+".section .rodata,\"a\"\n"+"".join(k[1] for k in ks)
open("exp_sync3.s","w").write(instrument(txt))
```
